```python
import torch

def _softmax(x, axis=-1):
    return torch.softmax(x, dim=axis)

def _gelu(x):
    return torch.nn.functional.gelu(x, approximate='tanh')

def _silu(x):
    return torch.nn.functional.silu(x)

def _sigmoid(x):
    return torch.sigmoid(x)

def _layernorm(x, axis=-1, eps=1e-05):
    m = x.mean(dim=axis, keepdim=True)
    v = x.var(dim=axis, keepdim=True, unbiased=False)
    return (x - m) / torch.sqrt(v + eps)

def _scatter_add(tgt, idx, src, axis=0):
    return tgt.clone().index_add_(axis, idx, src)

def _segment_sum(src, seg, n):
    out = torch.zeros((n,) + src.shape[1:], dtype=src.dtype)
    return out.index_add_(0, seg, src)

def _pad(x, pw):
    flat = tuple((v for pair in reversed(pw) for v in pair))
    return torch.nn.functional.pad(x, flat)
kernel_name = 'adaLN_cond__mha_block_cached__swiglu_ffn__decode'

def setup_inputs():

    _w = lambda a: (lambda t: t.to(torch.bfloat16) if t.is_floating_point() else t)(torch.as_tensor(a))

    def _A_setup():
        B, Sq, D = (1, 1, 576)
        H, Sk, Dh = (32, 8192, 128)
        return {'x': _w((lambda *s: torch.randn(*s, dtype=torch.bfloat16) * 0.05)(B, Sq, D)), 'k_cache': _w((lambda *s: torch.randn(*s, dtype=torch.bfloat16) * 3.2)(B, H, Sk, Dh)), 'v_cache': _w((lambda *s: torch.randn(*s, dtype=torch.bfloat16) * 0.4)(B, H, Sk, Dh)), 'wq': _w((lambda *s: torch.randn(*s, dtype=torch.bfloat16) * 3.2)(D, H * Dh) * D ** (-0.5)), 'wo': _w((lambda *s: torch.randn(*s, dtype=torch.bfloat16) * 0.4)(H * Dh, D) * (H * Dh) ** (-0.5))}
    _A_in = _A_setup()

    def _B_setup():
        B, S, D, F = (1, 1, 576, 4608)
        return {'x': _w((lambda *s: torch.randn(*s, dtype=torch.bfloat16) * 0.05)(B, S, D)), 'w_gate': _w((lambda *s: torch.randn(*s, dtype=torch.bfloat16) * 0.05)(D, F)), 'w_up': _w((lambda *s: torch.randn(*s, dtype=torch.bfloat16) * 0.05)(D, F)), 'w_down': _w((lambda *s: torch.randn(*s, dtype=torch.bfloat16) * 0.05)(F, D))}
    _B_in = _B_setup()
    return {'A_x': _A_in['x'], 'A_k_cache': _A_in['k_cache'], 'A_v_cache': _A_in['v_cache'], 'A_wq': _A_in['wq'], 'A_wo': _A_in['wo'], 'B_x': _B_in['x'], 'B_w_gate': _B_in['w_gate'], 'B_w_up': _B_in['w_up'], 'B_w_down': _B_in['w_down'], 'c': _w((lambda *s: torch.randn(*s, dtype=torch.bfloat16) * 0.1)(1, 576) * 8.0), 'w_mod': _w((lambda *s: torch.randn(*s, dtype=torch.bfloat16) * 0.1)(576, 6 * 576) * 576 ** (-0.5) * 8.0)}

def reference(A_x, A_k_cache, A_v_cache, A_wq, A_wo, B_x, B_w_gate, B_w_up, B_w_down, c, w_mod):

    def _A_ref(x, k_cache, v_cache, wq, wo):
        B, Sq, D = x.shape
        H, Dh = (32, 128)
        q = (lambda x, *d: x.permute(*d))((x @ wq).reshape(B, Sq, H, Dh), 0, 2, 1, 3)
        scores = torch.einsum('bhqd,bhkd->bhqk', q, k_cache) * Dh ** (-0.5)
        p = _softmax(scores, axis=-1)
        o = torch.einsum('bhqk,bhkd->bhqd', p, v_cache)
        return (lambda x, *d: x.permute(*d))(o, 0, 2, 1, 3).reshape(B, Sq, H * Dh) @ wo

    def _B_ref(x, w_gate, w_up, w_down):
        g = _silu(x @ w_gate)
        u = x @ w_up
        return g * u @ w_down
    x = A_x
    mod = (_silu(c) @ w_mod).reshape(c.shape[0], 6, 1, -1)
    sa, ca, ga, sb, cb, gb = (mod[:, 0].clone(), mod[:, 1].clone(), mod[:, 2].clone(), mod[:, 3].clone(), mod[:, 4].clone(), mod[:, 5].clone())
    h = _layernorm(x, axis=-1) * (1 + ca) + sa
    x = x + ga * _A_ref(h, A_k_cache, A_v_cache, A_wq, A_wo)
    h = _layernorm(x, axis=-1) * (1 + cb) + sb
    x = x + gb * _B_ref(h, B_w_gate, B_w_up, B_w_down)
    return x
```

```python
import re

TRANS = ('v_exp_f32', 'v_log_f32', 'v_rcp_f32', 'v_rsq_f32', 'v_sqrt_f32', 'v_sin_f32', 'v_cos_f32')

def _regs(tok):
    tok = tok.strip().lstrip('-')
    m = re.match(r'abs\((.*)\)$', tok)
    if m: tok = m.group(1)
    tok = tok.strip('|')
    m = re.match(r'^([vs])(\d+)$', tok)
    if m: return [(m.group(1), int(m.group(2)))]
    m = re.match(r'^([vs])\[(\d+):(\d+)\]$', tok)
    if m: return [(m.group(1), i) for i in range(int(m.group(2)), int(m.group(3)) + 1)]
    if tok in ('vcc', 'vcc_lo', 'vcc_hi'): return [('vcc', 0)]
    if tok in ('exec', 'exec_lo', 'exec_hi'): return [('exec', 0)]
    return []

class Asm:
    def __init__(self):
        self.lines = []
        self.t = 0
        self.vw = {}
        self.sw = {}
        self.store_data = {}
        self.maxv = 0
        self.maxs = 0
        self.nops = 0

    def raw(self, s):
        self.lines.append(s)

    def comment(self, s):
        self.lines.append('    ; ' + s)

    def label(self, name):
        self.lines.append(name + ':')
        self.flush_hazards()

    def flush_hazards(self):
        need = 0
        for (tt, kind, op) in self.vw.values(): need = max(need, tt + 4 - self.t)
        for tt in self.sw.values(): need = max(need, tt + 6 - self.t)
        self._pending_label_pad = need
        if need > 0:
            lab = self.lines.pop()
            self.lines.append('    s_nop %d' % (need - 1)); self.nops += 1
            self.lines.append(lab)
            self.t += need
        self.vw.clear(); self.sw.clear(); self.store_data.clear()

    def branch(self, text):
        need = 0
        for (tt, kind, op) in self.vw.values(): need = max(need, tt + 4 - self.t - 1)
        for r, tt in self.sw.items():
            need = max(need, tt + 6 - self.t - 1)
        if need > 0:
            self.lines.append('    s_nop %d' % (need - 1)); self.t += need; self.nops += 1
        self.lines.append('    ' + text); self.t += 1

    def __call__(self, text):
        for ln in text.strip().split('\n'):
            ln = ln.strip()
            if not ln: continue
            if ln.startswith(';'):
                self.lines.append('    ' + ln); continue
            self._one(ln)

    def _one(self, ln):
        code = ln.split(';')[0].strip()
        sp = code.split(None, 1)
        op = sp[0]
        rest = sp[1] if len(sp) > 1 else ''
        ops = []; cur = ''; depth = 0
        for ch in rest:
            if ch in '[(': depth += 1
            if ch in '])': depth -= 1
            if ch == ',' and depth == 0:
                ops.append(cur); cur = ''
            else: cur += ch
        if cur.strip(): ops.append(cur)
        mods = ''
        if ops:
            parts = ops[-1].strip().split(None, 1)
            ops[-1] = parts[0]
            if len(parts) > 1: mods = parts[1]
        R = [_regs(o) for o in ops]
        for rr in R:
            for k, n in rr:
                if k == 'v': self.maxv = max(self.maxv, n)
                if k == 's': self.maxs = max(self.maxs, n)
        base = op.replace('_e32', '').replace('_e64', '').replace('_dpp', '').replace('_sdwa', '')
        is_valu = op.startswith('v_')
        is_vmem = op.startswith('buffer_') or op.startswith('global_')
        is_ds = op.startswith('ds_')
        is_dpp = op.endswith('_dpp')
        is_perml = base.startswith('v_permlane')
        is_dot = base.startswith('v_dot')
        dst = []; src = []
        if is_valu:
            if base.startswith('v_cmp'):
                dst = R[0]; src = sum(R[1:], [])
            elif is_perml:
                dst = R[0] + R[1]; src = R[0] + R[1]
            elif base in ('v_readfirstlane_b32', 'v_readlane_b32'):
                dst = R[0]; src = sum(R[1:], [])
            elif base in ('v_add_co_u32', 'v_addc_co_u32', 'v_sub_co_u32'):
                dst = R[0] + R[1]; src = sum(R[2:], [])
            else:
                dst = R[0]; src = sum(R[1:], [])
                if base in ('v_dot2c_f32_bf16', 'v_fmac_f32', 'v_writelane_b32') or is_dpp or op.endswith('_sdwa'):
                    src = src + R[0]
                if base == 'v_cndmask_b32' and len(R) == 3: src = src + [('vcc', 0)]
        elif is_vmem:
            if 'load' in op:
                dst = []; src = sum(R[1:], [])
                ldst = R[0]
            else:
                src = sum(R, [])
        elif is_ds:
            if 'read' in op or 'rtn' in op or 'permute' in op:
                src = sum(R[1:], [])
            else:
                src = sum(R, [])
        else:
            src = sum(R, [])
        need = 0
        def req(tt, ws):
            nonlocal need
            need = max(need, tt + ws + 1 - self.t)
        for i, (k, n) in enumerate(src):
            if k == 'v' and n in self.vw:
                tt, kind, pop = self.vw[n]
                if is_valu or is_vmem or is_ds:
                    if kind == 'dot':
                        accum_same = (is_dot and base == pop and (
                            (base == 'v_dot2c_f32_bf16' and (k, n) in R[0] and (k, n) not in R[1] + R[2]) or
                            (base == 'v_dot2_f32_bf16' and (k, n) in R[3] and (k, n) not in R[1] + R[2])))
                        if not accum_same: req(tt, 3)
                    if kind == 'trans' and is_valu and base not in TRANS: req(tt, 1)
                    if kind == 'trans' and (is_vmem or is_ds): req(tt, 1)
                    if kind == 'sdwa': req(tt, 1)
                    if is_dpp and (k, n) in R[1]: req(tt, 2)
                    if is_dpp and (k, n) in R[0] and not (is_dot and kind == 'dot' and base == pop): req(tt, 2)
                    if is_perml: req(tt, 2)
                    if base in ('v_readfirstlane_b32', 'v_readlane_b32'): req(tt, 1)
            if k in ('s', 'vcc') and (k, n) in self.sw:
                tt = self.sw[(k, n)]
                if is_vmem: req(tt, 5)
                elif is_valu:
                    if base in ('v_readlane_b32', 'v_writelane_b32'): req(tt, 4)
                    else: req(tt, 2)
                else: req(tt, 1)
        if op in ('s_cbranch_vccz', 's_cbranch_vccnz') and ('vcc', 0) in self.sw:
            req(self.sw[('vcc', 0)], 1)
        for (k, n) in dst:
            if k == 'v':
                if n in self.vw:
                    tt, kind, pop = self.vw[n]
                    if kind == 'dot' and not (is_dot and base == pop): req(tt, 3)
                if n in self.store_data: req(self.store_data[n], 2)
        if is_vmem and 'load' in op:
            for (k, n) in ldst:
                if k == 'v' and n in self.store_data: req(self.store_data[n], 1)
                if k == 'v' and n in self.vw and self.vw[n][1] == 'dot': req(self.vw[n][0], 3)
        if is_ds and ('read' in op):
            for (k, n) in R[0]:
                if k == 'v' and n in self.store_data: req(self.store_data[n], 1)
                if k == 'v' and n in self.vw and self.vw[n][1] == 'dot': req(self.vw[n][0], 3)
        if need > 0:
            self.lines.append('    s_nop %d' % (need - 1)); self.t += need; self.nops += 1
        self.lines.append('    ' + ln)
        now = self.t
        if op == 's_nop':
            self.t += int(ops[0], 0) + 1
        else:
            self.t += 1
        if is_valu:
            kind = 'dot' if is_dot else ('trans' if base in TRANS else ('sdwa' if op.endswith('_sdwa') else 'valu'))
            for (k, n) in dst:
                if k == 'v': self.vw[n] = (now, kind, base)
                else: self.sw[(k, n)] = now
        elif is_vmem and ('x4' in op or 'x3' in op) and 'store' in op:
            for (k, n) in R[0]:
                if k == 'v': self.store_data[n] = now
        elif not is_vmem and not is_ds:
            if R and op.startswith('s_') and not op.startswith('s_cmp') and not op.startswith('s_cbranch'):
                for r in R[0]:
                    self.sw.pop(r, None)

    def text(self):
        return '\n'.join(self.lines) + '\n'


class VM:
    def __init__(self, a):
        self.a = a
        self.q = []
        self.done = 0
    def issue(self, tag, text):
        self.a(text)
        self.q.append(tag)
    def wait_tag(self, tag):
        idx = max(i for i, t in enumerate(self.q) if t == tag)
        self.wait_n(idx + 1)
    def wait_n(self, ncomplete):
        if ncomplete <= self.done: return
        n = len(self.q) - ncomplete
        assert n <= 63
        self.a('s_waitcnt vmcnt(%d)' % n)
        self.done = ncomplete
    def throttle(self, maxfly):
        self.wait_n(len(self.q) - (maxfly - 1))
    def all(self):
        self.wait_n(len(self.q))
    def reset(self):
        self.q = []; self.done = 0
```

```python
import sys, json
from asmlib import Asm, VM

KNAME = 'adaLN_cond__mha_block_cached__swiglu_ffn__decode_kernel'

W_MOD = 0x1000
W_QP = 0x10000
W_ML = 0x50000
W_YS = 0x60000
W_XB = 0xF0000
W_DS = 0x100000
W_DIAG = 0x200000
W_SIZE = 0x400000
L_QFLAG = 0; L_TRIG = 4; L_TRIG2 = 8
L_QS = 64; L_FS = 320; L_H1S = 384
L_OPART = 1024; L_YPART = 5120; L_GU = 23552; L_DPART = 24064
L_SIZE = 24064 + 4 * 2304
LOG2E = 0x3fb8aa3b
SCALE = 0x3db504f3
INV576 = 0x3ae38e39
EPS = 0x3727c5ac
POLL_LIMIT = 400000

DEF = dict(diag=0, N=8, interleave=1, kv_nt=1, w_nt=1, trig=60, trig2=-1, wo_pos=20, sleep=0, nslots=36, early_v=4, cpf=0, so=0, prio=0, nowo=0)

def gen(**kw):
    P = dict(DEF); P.update(kw)
    a = Asm()
    DIAG = P['diag']
    NT = ' nt' if P['kv_nt'] else ''
    WNT = ' nt' if P['w_nt'] else ''
    uid = [0]
    def L(n):
        uid[0] += 1
        return 'L_%s_%d' % (n, uid[0])
    def stamp(k):
        if DIAG: a('s_memrealtime s[%d:%d]' % (80 + 2 * k, 81 + 2 * k))
    def srd(d, lo, hi, size):
        a('s_mov_b32 s%d, s%d' % (d, lo)); a('s_mov_b32 s%d, s%d' % (d + 1, hi))
        a('s_mov_b32 s%d, 0x%x' % (d + 2, size)); a('s_mov_b32 s%d, 0x00020000' % (d + 3))
    def srd_off(d, lo, hi, off_sreg, size_total):
        a('s_add_u32 s%d, s%d, s%d' % (d, lo, off_sreg)); a('s_addc_u32 s%d, s%d, 0' % (d + 1, hi))
        a('s_sub_u32 s%d, 0x%x, s%d' % (d + 2, size_total, off_sreg)); a('s_mov_b32 s%d, 0x00020000' % (d + 3))
    def endwave(nst):
        if DIAG:
            stamp(9)
            a('s_waitcnt lgkmcnt(0)')
            a('s_mov_b64 exec, -1')
            a('v_mov_b32 v2, 0')
            for k in range(10):
                a('v_writelane_b32 v2, s%d, %d' % (80 + 2 * k, k))
            a('s_getreg_b32 s12, hwreg(HW_REG_XCC_ID)')
            a('v_writelane_b32 v2, s12, 10')
            a('s_getreg_b32 s12, hwreg(HW_REG_HW_ID)')
            a('v_writelane_b32 v2, s12, 11')
            a('s_mul_i32 s12, s2, 12'); a('s_add_u32 s12, s12, s3'); a('s_lshl_b32 s12, s12, 6')
            a('s_add_u32 s12, s12, 0x%x' % W_DIAG)
            a('v_and_b32 v1, 63, v0'); a('v_lshlrev_b32 v3, 2, v1')
            a('s_mov_b64 exec, 0xffff')
            a('buffer_store_dword v2, v3, s[48:51], s12 offen')
        a('s_endpgm')
    def poll(loads, check, name):
        lp = L(name); dn = L(name + 'd')
        a('s_mov_b32 s14, %d' % POLL_LIMIT)
        a.label(lp)
        for t in loads: a(t)
        a('s_waitcnt vmcnt(0)')
        check()
        a('s_cmp_eq_u64 vcc, 0')
        a.branch('s_cbranch_scc1 ' + dn)
        if P['sleep']: a('s_sleep %d' % P['sleep'])
        a('s_sub_u32 s14, s14, 1')
        a.branch('s_cbranch_scc0 ' + lp)
        a.label(dn)
    def tagcheck(regs):
        def f():
            a('v_cmp_ne_u64 vcc, s[44:45], v[%d:%d]' % (regs[0] + 2, regs[0] + 3))
            for r in regs[1:]:
                a('v_cmp_ne_u64 s[12:13], s[44:45], v[%d:%d]' % (r + 2, r + 3))
                a('s_or_b64 vcc, vcc, s[12:13]')
        return f
    def ldsflag_wait(off, vz, vt, sleep):
        lp = L('fw')
        a.label(lp)
        a('ds_read_b32 v%d, v%d offset:%d' % (vt, vz, off))
        a('s_waitcnt lgkmcnt(0)')
        a('v_readfirstlane_b32 s12, v%d' % vt)
        a('s_cmp_lg_u32 s12, 0')
        dn = L('fwd')
        a.branch('s_cbranch_scc1 ' + dn)
        a('s_sleep %d' % sleep)
        a.branch('s_branch ' + lp)
        a.label(dn)
    def allred(regs, tmps, op):
        for sh in (8, 4, 2, 1):
            for r in regs: a('%s_dpp v%d, v%d, v%d row_ror:%d row_mask:0xf bank_mask:0xf' % (op, r, r, r, sh))
        for sw in ('v_permlane16_swap_b32', 'v_permlane32_swap_b32'):
            for r, t in zip(regs, tmps): a('v_mov_b32 v%d, v%d' % (t, r))
            for r, t in zip(regs, tmps): a('%s v%d, v%d' % (sw, r, t))
            for r, t in zip(regs, tmps): a('%s v%d, v%d, v%d' % (op, r, r, t))
    def red8_g(acc):
        for k in range(4): a('v_permlane32_swap_b32 v%d, v%d' % (acc[k], acc[k + 4]))
        for k in range(4): a('v_add_f32 v%d, v%d, v%d' % (acc[k], acc[k], acc[k + 4]))
        for k in range(2): a('v_permlane16_swap_b32 v%d, v%d' % (acc[k], acc[k + 2]))
        for k in range(2): a('v_add_f32 v%d, v%d, v%d' % (acc[k], acc[k], acc[k + 2]))
    def pairperm(A, B, spare):
        lo = []; hi = []
        for x, y in zip(A, B):
            a('v_perm_b32 v%d, v%d, v%d, s76' % (spare, y, x))
            a('v_perm_b32 v%d, v%d, v%d, s77' % (y, y, x))
            lo.append(spare); hi.append(y); spare = x
        return lo, hi, spare
    def rnd2(x, y, t):
        a('v_cvt_pk_bf16_f32 v%d, v%d, v%d' % (t, x, y))
        a('v_lshlrev_b32 v%d, 16, v%d' % (x, t))
        a('v_and_b32 v%d, s78, v%d' % (y, t))
    def rnd1(x):
        a('v_cvt_pk_bf16_f32 v%d, v%d, v%d' % (x, x, x))
        a('v_and_b32 v%d, s78, v%d' % (x, x))
    def ln_stats(xs, s1, s2, t1, t2):
        a('v_mul_f32 v%d, v%d, v%d' % (s2, xs[0], xs[0]))
        a('v_add_f32 v%d, v%d, v%d' % (s1, xs[0], xs[1]))
        a('v_fmac_f32 v%d, v%d, v%d' % (s2, xs[1], xs[1]))
        for x in xs[2:]:
            a('v_add_f32 v%d, v%d, v%d' % (s1, s1, x))
            a('v_fmac_f32 v%d, v%d, v%d' % (s2, x, x))
        allred([s1, s2], [t1, t2], 'v_add_f32')
        a('v_mul_f32 v%d, 0x%x, v%d' % (s1, INV576, s1))
        a('v_mul_f32 v%d, 0x%x, v%d' % (s2, INV576, s2))
        a('v_fma_f32 v%d, -v%d, v%d, v%d' % (s2, s1, s1, s2))
        a('v_max_f32 v%d, 0, v%d' % (s2, s2))
        rnd2(s1, s2, t1)
        a('v_add_f32 v%d, 0x%x, v%d' % (s2, EPS, s2))
        rnd1(s2)
        a('v_sqrt_f32 v%d, v%d' % (s2, s2))
        rnd1(s2)
        a('v_rcp_f32 v%d, v%d' % (s2, s2))
    def ln_apply(pairs, mean, rs, t):
        for (x0, x1, c0, c1, s0, s1, o) in pairs:
            a('v_sub_f32 v%d, v%d, v%d' % (x0, x0, mean)); a('v_sub_f32 v%d, v%d, v%d' % (x1, x1, mean))
        for (x0, x1, c0, c1, s0, s1, o) in pairs: rnd2(x0, x1, o)
        for (x0, x1, c0, c1, s0, s1, o) in pairs:
            a('v_mul_f32 v%d, v%d, v%d' % (x0, x0, rs)); a('v_mul_f32 v%d, v%d, v%d' % (x1, x1, rs))
        for (x0, x1, c0, c1, s0, s1, o) in pairs: rnd2(x0, x1, o)
        for (x0, x1, c0, c1, s0, s1, o) in pairs:
            a('v_mul_f32 v%d, v%d, v%d' % (x0, x0, c0)); a('v_mul_f32 v%d, v%d, v%d' % (x1, x1, c1))
        for (x0, x1, c0, c1, s0, s1, o) in pairs: rnd2(x0, x1, o)
        for (x0, x1, c0, c1, s0, s1, o) in pairs:
            a('v_add_f32 v%d, v%d, v%d' % (x0, x0, s0)); a('v_add_f32 v%d, v%d, v%d' % (x1, x1, s1))
        for (x0, x1, c0, c1, s0, s1, o) in pairs: a('v_cvt_pk_bf16_f32 v%d, v%d, v%d' % (o, x0, x1))
    def silu(xs, ts):
        for x, t in zip(xs, ts): a('v_mul_f32 v%d, 0x%x, v%d' % (t, LOG2E ^ 0x80000000, x))
        for x, t in zip(xs, ts): a('v_exp_f32 v%d, v%d' % (t, t))
        for x, t in zip(xs, ts): a('v_add_f32 v%d, 1.0, v%d' % (t, t))
        for x, t in zip(xs, ts): a('v_rcp_f32 v%d, v%d' % (t, t))
        for x, t in zip(xs, ts): a('v_mul_f32 v%d, v%d, v%d' % (x, x, t))
    def sum_publish(nparts, lbase, wsbase, rstride, idreg, wv):
        a('s_mul_i32 s12, s%d, 48' % wv)
        a('v_add_u32 v4, s12, v1')
        a('v_lshlrev_b32 v5, 4, v4')
        a('v_lshrrev_b32 v6, 2, v4')
        a('s_mov_b32 s13, %d' % rstride)
        a('v_mul_lo_u32 v6, s13, v6')
        a('v_and_b32 v7, 3, v4')
        a('v_lshl_add_u32 v6, v7, 4, v6')
        a('s_lshl_b32 s12, s%d, 6' % idreg)
        a('s_add_u32 s15, s12, 0x%x' % wsbase)
    def sum_publish2(nparts, lbase):
        a('s_mov_b32 exec_lo, -1'); a('s_mov_b32 exec_hi, 0xffff')
        for k in range(nparts):
            a('ds_read_b128 v[%d:%d], v5 offset:%d' % (24 + 4 * k, 27 + 4 * k, lbase + k * 2304))
        n = nparts; step = 1
        a('s_waitcnt lgkmcnt(0)')
        while step < nparts:
            for k in range(0, nparts, 2 * step):
                for hh in (0, 2):
                    x = 24 + 4 * k + hh; y = 24 + 4 * (k + step) + hh
                    a('v_pk_add_f32 v[%d:%d], v[%d:%d], v[%d:%d]' % (x, x + 1, x, x + 1, y, y + 1))
            step *= 2
        for k in range(4): a('v_min_u32 v%d, -2, v%d' % (24 + k, 24 + k))
        a('buffer_store_dwordx4 v[24:27], v6, s[48:51], s15 offen sc1')

    a.raw(KNAME + ':')
    a('s_cmp_ge_u32 s2, 256')
    a.branch('s_cbranch_scc1 L_exit')
    a('s_load_dwordx16 s[16:31], s[0:1], 0')
    a('s_load_dwordx8 s[32:39], s[0:1], 64')
    a('s_load_dwordx4 s[40:43], s[0:1], 96')
    if DIAG:
        for k in range(80, 100): a('s_mov_b32 s%d, 0' % k)
    stamp(0)
    a('v_lshrrev_b32 v2, 6, v0')
    a('v_and_b32 v1, 63, v0')
    a('v_readfirstlane_b32 s3, v2')
    a('s_and_b32 s4, s2, 7')
    a('s_lshr_b32 s5, s2, 3')
    a('s_and_b32 s6, s5, 3'); a('s_lshl_b32 s12, s4, 2'); a('s_add_u32 s6, s6, s12')
    a('s_lshr_b32 s7, s5, 2')
    a('s_lshl_b32 s8, s6, 3'); a('s_add_u32 s8, s8, s7')
    a('s_mov_b32 s72, 0xcccccccc'); a('s_mov_b32 s73, 0xcccccccc')
    a('s_mov_b32 s74, 0xaaaaaaaa'); a('s_mov_b32 s75, 0xaaaaaaaa')
    a('s_mov_b32 s76, 0x05040100'); a('s_mov_b32 s77, 0x07060302'); a('s_mov_b32 s78, 0xffff0000')
    a('s_mul_i32 s9, s4, 18'); a('s_add_u32 s9, s9, s5'); a('s_mov_b32 s10, 1')
    a('s_cmp_lt_u32 s5, 18')
    a.branch('s_cbranch_scc1 L_role_done')
    a('s_sub_u32 s9, s5, 18'); a('s_lshl_b32 s9, s9, 3'); a('s_add_u32 s9, s9, s4')
    a('s_cmp_lt_u32 s9, 36'); a('s_cselect_b32 s10, 2, 0')
    a.label('L_role_done')
    a('s_waitcnt lgkmcnt(0)')
    a('s_load_dwordx2 s[44:45], s[42:43], 0')
    srd(48, 42, 43, W_SIZE)
    a('s_cmp_ge_u32 s3, 8')
    a.branch('s_cbranch_scc1 L_helper')

    def tag_ready():
        a('s_waitcnt lgkmcnt(0)')
        a('s_add_u32 s44, s44, 0x7f4a7c15'); a('s_addc_u32 s45, s45, 0x9e3779b9')

    vm = VM(a)
    N = P['N']
    a('s_lshl_b32 s12, s8, 18')
    srd_off(52, 18, 19, 12, 0x4000000)
    srd_off(56, 20, 21, 12, 0x4000000)
    a('v_lshlrev_b32 v2, 4, v1')
    a('s_lshl_b32 s12, s3, %d' % (10 if P['interleave'] else 15))
    a('v_add_u32 v2, s12, v2')
    STEP = 8192 if P['interleave'] else 1024
    NS = P['nslots']
    free = list(range(NS))
    sreg = lambda s: 24 + 4 * s
    kslot = {}; vslot = {}
    cnt = [0]
    def trig_check():
        for key, off in (('trig', L_TRIG), ('trig2', L_TRIG2)):
            if cnt[0] == P[key]:
                sk = L('tg')
                a('s_cmp_lg_u32 s3, 0')
                a.branch('s_cbranch_scc1 ' + sk)
                a('ds_write_b32 v10, v11 offset:%d' % off)
                a.label(sk)
        cnt[0] += 1
    def ld_kv(kind, j):
        s = free.pop(0)
        (kslot if kind == 'K' else vslot)[j] = s
        vm.throttle(N)
        trig_check()
        a('s_mov_b32 s11, 0x%x' % (j * STEP))
        vm.issue((kind, j), 'buffer_load_dwordx4 v[%d:%d], v2, s[%d:%d], s11 offen%s' % (sreg(s), sreg(s) + 3, *((52, 55) if kind == 'K' else (56, 59)), NT))
    a('v_mov_b32 v10, 0'); a('v_mov_b32 v11, 1')
    for j in range(N): ld_kv('K', j)
    a('s_mul_i32 s12, s6, 147456'); a('s_mul_i32 s13, s3, 18432'); a('s_add_u32 s12, s12, s13')
    srd_off(60, 24, 25, 12, 4096 * 1152)
    a('v_lshrrev_b32 v5, 5, v1'); a('v_and_b32 v6, 31, v1')
    a('v_mul_u32_u24 v5, 9216, v5')
    a('v_lshl_add_u32 v3, v6, 4, v5')
    a('v_lshl_add_u32 v4, v6, 2, v5'); a('v_add_u32 v4, 1024, v4')
    a('v_and_b32 v5, 15, v1'); a('v_lshlrev_b32 v5, 4, v5')
    a('s_mov_b32 s79, 4608')
    for k in range(8): a('v_mov_b32 v%d, 0' % (16 + k))
    a('s_barrier')
    for j in range(N, 32): ld_kv('K', j)
    EV = min(P['early_v'], NS - 32)
    for j in range(EV): ld_kv('V', j)
    stamp(1)
    tag_ready()
    ldsflag_wait(L_QFLAG, 10, 12, 2)
    a('ds_read_b128 v[12:15], v5 offset:%d' % L_QS)
    a('s_waitcnt lgkmcnt(0)')
    stamp(2)
    S = [6, 7]
    def kbatch(b):
        X = [sreg(kslot[16 * b + j]) for j in range(16)]
        for g in range(4):
            vm.wait_tag(('K', 16 * b + 4 * g + 3))
            for k in range(4):
                for j in range(4 * g, 4 * g + 4):
                    a('v_dot2_f32_bf16 v%d, v%d, v%d, %s' % (X[j], X[j] + k, 12 + k, '0' if k == 0 else 'v%d' % X[j]))
        for i in range(8): a('v_add_f32_dpp v%d, v%d, v%d row_ror:8 row_mask:0xf bank_mask:0x3' % (X[i], X[i], X[i]))
        for i in range(8): a('v_add_f32_dpp v%d, v%d, v%d row_ror:8 row_mask:0xf bank_mask:0xc' % (X[i], X[i + 8], X[i + 8]))
        for i in range(4): a('v_add_f32_dpp v%d, v%d, v%d row_shl:4 row_mask:0xf bank_mask:0x5' % (X[i], X[i], X[i]))
        for i in range(4): a('v_add_f32_dpp v%d, v%d, v%d row_shr:4 row_mask:0xf bank_mask:0xa' % (X[i], X[i + 4], X[i + 4]))
        for i in range(4): a('v_add_f32_dpp v%d, v%d, v%d quad_perm:[2,3,0,1] row_mask:0xf bank_mask:0xf' % (X[i], X[i], X[i]))
        for i in range(2): a('v_cndmask_b32 v%d, v%d, v%d, s[72:73]' % (X[i], X[i], X[i + 2]))
        for i in range(2): a('v_add_f32_dpp v%d, v%d, v%d quad_perm:[1,0,3,2] row_mask:0xf bank_mask:0xf' % (X[i], X[i], X[i]))
        a('v_cndmask_b32 v%d, v%d, v%d, s[74:75]' % (S[b], X[0], X[1]))
        for j in range(16): free.append(kslot[16 * b + j])
    kbatch(0)
    nv = EV
    while ('K', 31) not in vm.q[:vm.done] and nv < 32 and free:
        ld_kv('V', nv); nv += 1
    kbatch(1)
    stamp(3)
    rnd2(6, 7, 8)
    a('v_mul_f32 v6, 0x%x, v6' % SCALE); a('v_mul_f32 v7, 0x%x, v7' % SCALE)
    rnd2(6, 7, 8)
    a('v_max_f32 v12, v6, v7')
    allred([12], [8], 'v_max_f32')
    a('v_sub_f32 v6, v6, v12'); a('v_sub_f32 v7, v7, v12')
    a('v_mul_f32 v6, 0x%x, v6' % LOG2E); a('v_mul_f32 v7, 0x%x, v7' % LOG2E)
    a('v_exp_f32 v6, v6'); a('v_exp_f32 v7, v7')
    a('v_add_f32 v13, v6, v7')
    a('v_cvt_pk_bf16_f32 v8, 0, v6'); a('v_cvt_pk_bf16_f32 v9, 0, v7')
    a('v_cvt_pk_bf16_f32 v6, v6, 0'); a('v_cvt_pk_bf16_f32 v7, v7, 0')
    allred([13], [14], 'v_add_f32')
    a('v_mov_b32 v14, s44'); a('v_mov_b32 v15, s45')
    a('s_lshl_b32 s12, s6, 10'); a('s_lshl_b32 s13, s7, 7'); a('s_add_u32 s12, s12, s13')
    a('s_lshl_b32 s13, s3, 4'); a('s_add_u32 s12, s12, s13'); a('s_add_u32 s12, s12, 0x%x' % W_ML)
    a('s_mov_b64 exec, 1')
    vm.issue('ML', 'buffer_store_dwordx4 v[12:15], v10, s[48:51], s12 offen sc1')
    a('s_mov_b64 exec, -1')
    woA = {}; woB = {}; woC = {}
    def pv(j):
        vm.wait_tag(('V', j))
        R = sreg(vslot[j]); b = j >> 4; i = j & 15
        for k in range(4):
            a('v_dot2c_f32_bf16_dpp v%d, v%d, v%d row_newbcast:%d row_mask:0xf bank_mask:0xf' % (16 + 2 * k, 6 + b, R + k, i))
            a('v_dot2c_f32_bf16_dpp v%d, v%d, v%d row_newbcast:%d row_mask:0xf bank_mask:0xf' % (17 + 2 * k, 8 + b, R + k, i))
        free.append(vslot[j])
    pvn = [0]
    def need_slot():
        while not free:
            pv(pvn[0]); pvn[0] += 1
    def opportunistic_pv():
        while pvn[0] < 32 and ('V', pvn[0]) in vm.q[:vm.done]:
            pv(pvn[0]); pvn[0] += 1
    todo = [('V', j) for j in range(nv, 32)]
    wp = max(0, min(len(todo), P['wo_pos'] - nv))
    todo = todo[:wp] + [('WO', r) for r in range(8)] + todo[wp:]
    cslots = []
    for kind, j in todo:
        if kind == 'V':
            need_slot(); opportunistic_pv(); ld_kv('V', j)
        else:
            r = j
            so = '0' if r < 4 else 's79'
            for which, d in (('A', woA), ('B', woB)):
                need_slot(); opportunistic_pv()
                s = free.pop(0); d[r] = sreg(s)
                vm.throttle(N); trig_check()
                if P['nowo']: a('s_mov_b32 s62, 0')
                vm.issue(('WO', r), 'buffer_load_dwordx4 v[%d:%d], v3, s[60:63], %s offen offset:%d' % (sreg(s), sreg(s) + 3, so, (r & 3) * 1152 + (0 if which == 'A' else 512)))
            if r % 4 == 0:
                need_slot(); cslots.append(free.pop(0))
            woC[r] = sreg(cslots[-1]) + (r & 3)
            vm.issue(('WO', r), 'buffer_load_dword v%d, v4, s[60:63], %s offen offset:%d' % (woC[r], so, (r & 3) * 1152))
    while cnt[0] <= max(P['trig'], P['trig2']): trig_check()
    stamp(4)
    vm.wait_tag(('WO', 7))
    opportunistic_pv()
    spare = 14
    wpair = []
    for rp in range(4):
        A = [woA[2*rp] + k for k in range(4)] + [woB[2*rp] + k for k in range(4)] + [woC[2*rp]]
        B = [woA[2*rp+1] + k for k in range(4)] + [woB[2*rp+1] + k for k in range(4)] + [woC[2*rp+1]]
        lo, hi, spare = pairperm(A, B, spare)
        wpair.append((lo, hi))
    a('v_and_b32 v12, 15, v1'); a('v_lshlrev_b32 v12, 5, v12'); a('v_lshrrev_b32 v13, 4, v1')
    a('v_lshl_add_u32 v12, v13, 3, v12'); a('s_lshl_b32 s12, s3, 9'); a('v_add_u32 v12, s12, v12')
    a('v_lshrrev_b32 v13, 5, v1'); a('v_lshlrev_b32 v13, 5, v13'); a('v_and_b32 v15, 3, v1')
    a('v_lshl_add_u32 v13, v15, 3, v13'); a('s_lshl_b32 s12, s3, 6'); a('v_add_u32 v13, s12, v13')
    a('v_and_b32 v15, 31, v1'); a('v_lshrrev_b32 v5, 5, v1'); a('v_lshlrev_b32 v3, 1, v15'); a('v_add_u32 v3, v3, v5')
    a('s_mul_i32 s12, s3, 2304')
    a('v_lshlrev_b32 v15, 4, v3'); a('v_add_u32 v15, s12, v15')
    a('v_lshlrev_b32 v5, 2, v3'); a('v_add_u32 v5, s12, v5')
    ys = []
    while len(ys) < 5 + 5:
        need_slot(); ys.append(free.pop(0))
    Y = [sreg(ys[k // 4]) + (k & 3) for k in range(18)]
    T = [sreg(s) for s in ys[5:]]
    for y in Y: a('v_mov_b32 v%d, 0' % y)
    while pvn[0] < 32:
        pv(pvn[0]); pvn[0] += 1
    stamp(5)
    if P['so']: a.branch('s_branch L_att_end')
    red8_g([16 + k for k in range(8)])
    a('ds_write_b64 v12, v[16:17] offset:%d' % L_OPART)
    a('s_waitcnt lgkmcnt(0)')
    a('s_barrier')
    fs = [sreg(free.pop(0)), T[4]]
    for k in range(4):
        a('ds_read2st64_b64 v[%d:%d], v13 offset0:%d offset1:%d' % (T[k], T[k] + 3, (L_OPART + 1024 * k) // 512, (L_OPART + 1024 * k + 512) // 512))
    a('ds_read_b128 v[%d:%d], v10 offset:%d' % (fs[0], fs[0] + 3, L_FS))
    a('ds_read_b128 v[%d:%d], v10 offset:%d' % (fs[1], fs[1] + 3, L_FS + 16))
    a('s_waitcnt lgkmcnt(0)')
    for e in range(2): a('v_mul_f32 v%d, v%d, v%d' % (16 + e, T[0] + e, fs[0]))
    for e in range(2): a('v_mul_f32 v%d, v%d, v%d' % (18 + e, T[0] + 2 + e, fs[0] + 1))
    for pw in range(2, 8):
        for e in range(2):
            a('v_fmac_f32 v%d, v%d, v%d' % (16 + 2 * (pw & 1) + e, T[pw >> 1] + 2 * (pw & 1) + e, fs[pw >> 2] + (pw & 3)))
    a('v_add_f32 v16, v16, v18'); a('v_add_f32 v17, v17, v19')
    a('v_cvt_pk_bf16_f32 v16, v16, v17')
    for rp in range(4):
        lo, hi = wpair[rp]
        for k in range(9):
            a('v_dot2c_f32_bf16_dpp v%d, v16, v%d row_newbcast:%d row_mask:0xf bank_mask:0xf' % (Y[2 * k], lo[k], rp))
            a('v_dot2c_f32_bf16_dpp v%d, v16, v%d row_newbcast:%d row_mask:0xf bank_mask:0xf' % (Y[2 * k + 1], hi[k], rp))
    def half_reduce_write(Y, vA, vC, lbase):
        prs = [(Y[k], Y[k + 4]) for k in range(4)] + [(Y[8 + k], Y[12 + k]) for k in range(4)] + [(Y[16], Y[17])]
        for x, y in prs: a('v_permlane32_swap_b32 v%d, v%d' % (x, y))
        for x, y in prs: a('v_add_f32 v%d, v%d, v%d' % (x, x, y))
        a('ds_write_b128 v%d, v[%d:%d] offset:%d' % (vA, Y[0], Y[0] + 3, lbase))
        a('ds_write_b128 v%d, v[%d:%d] offset:%d' % (vA, Y[8], Y[8] + 3, lbase + 1024))
        a('ds_write_b32 v%d, v%d offset:%d' % (vC, Y[16], lbase + 2048))
    half_reduce_write(Y, 15, 5, L_YPART)
    sum_publish(8, L_YPART, W_YS, 16384, 8, 3)
    a('s_waitcnt lgkmcnt(0)')
    a('s_barrier')
    stamp(6)
    a('s_cmp_ge_u32 s3, 3')
    a.branch('s_cbranch_scc1 L_att_end')
    sum_publish2(8, L_YPART)
    a.label('L_att_end')
    endwave(7)

    a.label('L_helper')
    a('s_sub_u32 s11, s3, 8')
    a('v_mov_b32 v10, 0'); a('v_mov_b32 v11, 1')
    if P['prio']: a('s_setprio %d' % P['prio'])
    if P['so']:
        a('ds_write_b32 v10, v11 offset:%d' % L_QFLAG); a('s_waitcnt lgkmcnt(0)'); a('s_barrier'); a('s_endpgm')
    a('s_cmp_eq_u32 s11, 0')
    a.branch('s_cbranch_scc1 L_ctrl')
    a('s_cmp_eq_u32 s11, 1')
    a.branch('s_cbranch_scc0 L_h23')
    a('s_cmp_ge_u32 s5, 27')
    a.branch('s_cbranch_scc1 L_h23')
    vm = VM(a)
    a('s_cmp_ge_u32 s5, 9'); a('s_cselect_b32 s12, 1, 0'); a('s_cmp_ge_u32 s5, 18'); a('s_cselect_b32 s79, 2, s12')
    a('s_mul_i32 s12, s79, 9'); a('s_sub_u32 s12, s5, s12'); a('s_mul_i32 s13, s4, 9'); a('s_add_u32 s46, s12, s13')
    a('s_cmp_eq_u32 s79, 1'); a('s_cselect_b32 s12, 3, 0'); a('s_cmp_eq_u32 s79, 2'); a('s_cselect_b32 s12, 2, s12'); a('s_mov_b32 s13, 1152'); a('s_cselect_b32 s13, 3456, s13')
    a('s_mul_i32 s12, s12, 1152'); a('s_lshl_b32 s15, s46, 4'); a('s_add_u32 s12, s12, s15')
    srd_off(52, 36, 37, 12, 576 * 6912)
    srd(56, 34, 35, 1152)
    srd(60, 16, 17, 1152)
    a('v_lshrrev_b32 v2, 1, v1'); a('v_and_b32 v3, 1, v1')
    a('v_mul_u32_u24 v4, 36, v2')
    a('s_mov_b32 s15, %d' % (18 * 6912)); a('v_mul_lo_u32 v2, s15, v2'); a('v_mul_lo_u32 v3, s13, v3'); a('v_add_u32 v2, v2, v3')
    vm.issue('c', 'buffer_load_dwordx4 v[24:27], v4, s[56:59], 0 offen')
    vm.issue('c', 'buffer_load_dwordx4 v[28:31], v4, s[56:59], 0 offen offset:16')
    vm.issue('c', 'buffer_load_dword v32, v4, s[56:59], 0 offen offset:32')
    a('v_lshlrev_b32 v5, 3, v1'); a('v_lshlrev_b32 v6, 1, v1')
    vm.issue('x', 'buffer_load_dwordx2 v[34:35], v5, s[60:63], 0 offen')
    vm.issue('x', 'buffer_load_dwordx2 v[36:37], v5, s[60:63], 0 offen offset:512')
    vm.issue('x', 'buffer_load_ushort v38, v6, s[60:63], 0 offen offset:1024')
    a('v_lshrrev_b32 v7, 4, v1'); a('v_lshlrev_b32 v7, 2, v7'); a('s_lshl_b32 s15, s46, 4')
    vm.issue('x', 'buffer_load_dword v39, v7, s[60:63], s15 offen')
    for t in range(18):
        a('s_mov_b32 s15, %d' % (t * 6912))
        vm.issue('w', 'buffer_load_dwordx4 v[%d:%d], v2, s[52:55], s15 offen%s' % (96 + 4 * t, 99 + 4 * t, ''))
    a('s_barrier')
    vm.wait_tag('c')
    C = list(range(40, 58)); TT = list(range(58, 76))
    for k in range(9):
        a('v_lshlrev_b32 v%d, 16, v%d' % (C[2 * k], 24 + k)); a('v_and_b32 v%d, s78, v%d' % (C[2 * k + 1], 24 + k))
    silu(C, TT)
    for k in range(9): a('v_cvt_pk_bf16_f32 v%d, v%d, v%d' % (24 + k, C[2 * k], C[2 * k + 1]))
    vm.wait_tag('x')
    XS = list(range(40, 49))
    for k in range(4):
        a('v_lshlrev_b32 v%d, 16, v%d' % (XS[2 * k], 34 + k)); a('v_and_b32 v%d, s78, v%d' % (XS[2 * k + 1], 34 + k))
    a('v_lshlrev_b32 v48, 16, v38')
    ln_stats(XS, 50, 51, 52, 53)
    a('v_lshlrev_b32 v40, 16, v39'); a('v_and_b32 v41, s78, v39')
    for k in range(8): a('v_mov_b32 v%d, 0' % (16 + k))
    stamp(1)
    spare = 33
    for tp in range(9):
        vm.wait_n(7 + 2 * tp + 2)
        A = [96 + 8 * tp + k for k in range(4)]; B = [100 + 8 * tp + k for k in range(4)]
        lo, hi, spare = pairperm(A, B, spare)
        for k in range(4):
            a('v_dot2c_f32_bf16 v%d, v%d, v%d' % (16 + 2 * k, 24 + tp, lo[k]))
            a('v_dot2c_f32_bf16 v%d, v%d, v%d' % (17 + 2 * k, 24 + tp, hi[k]))
    stamp(2)
    red8_g([16 + k for k in range(8)])
    for sh in (8, 4, 2):
        for r in (16, 17): a('v_add_f32_dpp v%d, v%d, v%d row_ror:%d row_mask:0xf bank_mask:0xf' % (r, r, r, sh))
    rnd2(16, 17, 18)
    a('v_add_f32 v18, 1.0, v16'); a('v_add_f32 v19, 1.0, v17')
    rnd2(18, 19, 20)
    a('s_cmp_lg_u32 s79, 2'); a('s_cselect_b64 s[12:13], s[74:75], 0')
    a('v_cndmask_b32 v16, v16, v18, s[12:13]'); a('v_cndmask_b32 v17, v17, v19, s[12:13]')
    a('v_cvt_pk_bf16_f32 v20, v16, v17')
    tag_ready()
    a('s_cmp_lg_u32 s79, 0')
    a.branch('s_cbranch_scc1 L_mod_pub')
    a('v_mov_b32_dpp v18, v16 quad_perm:[1,1,3,3] row_mask:0xf bank_mask:0xf')
    a('v_mov_b32_dpp v19, v17 quad_perm:[1,1,3,3] row_mask:0xf bank_mask:0xf')
    ln_apply([(40, 41, 18, 19, 16, 17, 20)], 50, 51, 21)
    a.label('L_mod_pub')
    a('v_mov_b32 v21, v20')
    a('v_permlane16_swap_b32 v20, v21')
    a('v_mov_b32 v22, s44'); a('v_mov_b32 v23, s45')
    a('s_lshl_b32 s12, s79, 1'); a('s_sub_u32 s12, s12, 1'); a('s_cmp_eq_u32 s79, 0'); a('s_cselect_b32 s12, 0, s12')
    a('s_cselect_b32 s100, 1, 3'); a('s_mov_b32 s101, s100')
    a('s_lshl_b32 s12, s12, 12'); a('s_lshl_b32 s13, s46, 5'); a('s_add_u32 s12, s12, s13'); a('s_add_u32 s12, s12, 0x%x' % W_MOD)
    a('v_and_b32 v3, 1, v1'); a('v_lshlrev_b32 v3, 12, v3'); a('v_lshrrev_b32 v4, 5, v1'); a('v_lshl_add_u32 v3, v4, 4, v3')
    a('s_mov_b64 exec, s[100:101]')
    a('buffer_store_dwordx4 v[20:23], v3, s[48:51], s12 offen sc1')
    a('s_mov_b64 exec, -1')
    stamp(3)
    a.branch('s_branch L_ffn_prep')
    a.label('L_h23')
    if P['cpf']:
        a('s_cmp_lg_u32 s11, 2')
        a.branch('s_cbranch_scc1 L_h23b')
        a('s_getpc_b64 s[12:13]')
        a.raw('L_pcref:')
        a('s_sub_u32 s12, s12, L_pcref-%s' % KNAME); a('s_subb_u32 s13, s13, 0')
        a('v_lshlrev_b32 v2, 4, v1'); a('v_mov_b32 v3, s13'); a('v_add_co_u32 v2, vcc, s12, v2'); a('v_addc_co_u32 v3, vcc, 0, v3, vcc')
        for k in range(P['cpf']):
            a('global_load_dwordx4 v[%d:%d], v[2:3], off offset:%d' % (24 + 4 * (k & 3), 27 + 4 * (k & 3), (k & 3) * 1024))
            if k & 3 == 3:
                a('v_add_co_u32 v2, vcc, 4096, v2'); a('v_addc_co_u32 v3, vcc, 0, v3, vcc')
        a.label('L_h23b')
    a('s_barrier')
    tag_ready()
    a.branch('s_branch L_ffn_prep')

    a.label('L_ctrl')
    vm = VM(a)
    a('s_mul_i32 s12, s7, %d' % (72 * 8192)); a('s_lshl_b32 s13, s6, 8'); a('s_add_u32 s12, s12, s13')
    srd_off(52, 22, 23, 12, 576 * 8192)
    a('v_lshrrev_b32 v2, 4, v1'); a('v_lshlrev_b32 v9, 2, v2'); a('v_lshlrev_b32 v2, 14, v2'); a('v_and_b32 v3, 15, v1'); a('v_lshl_add_u32 v2, v3, 4, v2')
    for t in range(18):
        a('s_mov_b32 s15, %d' % ((t >> 1) * 65536 + (t & 1) * 8192))
        vm.issue('w', 'buffer_load_dwordx4 v[%d:%d], v2, s[52:55], s15 offen%s' % (96 + 4 * t, 99 + 4 * t, WNT))
    a('ds_write_b32 v10, v10 offset:%d' % L_QFLAG); a('ds_write_b32 v10, v10 offset:%d' % L_TRIG); a('ds_write_b32 v10, v10 offset:%d' % L_TRIG2)
    for k in range(4): a('v_mov_b32 v%d, -1' % (24 + k))
    a('v_lshrrev_b32 v4, 2, v1'); a('v_and_b32 v5, 3, v1'); a('v_lshlrev_b32 v5, 4, v5')
    a('v_lshl_add_u32 v6, v4, 14, v5')
    a('s_lshl_b32 s12, s8, 6'); a('s_add_u32 s12, s12, 0x%x' % W_YS)
    a('s_mov_b32 exec_lo, -1'); a('s_mov_b32 exec_hi, 0xffff')
    for j in range(3):
        a('buffer_store_dwordx4 v[24:27], v6, s[48:51], s12 offen sc1')
        if j < 2: a('s_add_u32 s12, s12, %d' % (12 * 16384))
    a('s_cmp_lg_u32 s10, 1')
    a.branch('s_cbranch_scc1 L_clr2')
    a('v_mul_u32_u24 v6, 9216, v4'); a('v_add_u32 v6, v6, v5')
    a('s_lshl_b32 s12, s9, 6'); a('s_add_u32 s12, s12, 0x%x' % W_DS)
    for j in range(3):
        a('buffer_store_dwordx4 v[24:27], v6, s[48:51], s12 offen sc1')
        if j < 2: a('s_add_u32 s12, s12, %d' % (12 * 9216))
    a.label('L_clr2')
    a('s_mov_b64 exec, -1')
    a('s_cmp_lg_u32 s10, 2')
    a.branch('s_cbranch_scc1 L_clr3')
    a('v_lshl_add_u32 v6, v4, 12, v5')
    a('s_lshl_b32 s12, s9, 6'); a('s_add_u32 s12, s12, 0x%x' % W_XB)
    a('buffer_store_dwordx4 v[24:27], v6, s[48:51], s12 offen sc1')
    a.label('L_clr3')
    a('s_waitcnt lgkmcnt(0)')
    a('s_barrier')
    tag_ready()
    a('s_waitcnt vmcnt(0)')
    stamp(1)
    spare = 33
    wq_pairs = []
    for tp in range(9):
        A = [96 + 8 * tp + k for k in range(4)]; B = [100 + 8 * tp + k for k in range(4)]
        lo, hi, spare = pairperm(A, B, spare)
        wq_pairs.append((lo, hi))
    for k in range(8): a('v_mov_b32 v%d, 0' % (16 + k))
    a('v_min_u32 v4, 17, v1'); a('v_lshlrev_b32 v5, 4, v4'); a('v_lshlrev_b32 v6, 3, v4')
    a('s_mul_i32 s15, s7, 288'); a('s_add_u32 s15, s15, 0x%x' % W_MOD)
    poll(['buffer_load_dwordx4 v[24:27], v5, s[48:51], s15 offen sc1'], tagcheck([24]), 'h1')
    stamp(2)
    a('ds_write_b64 v6, v[24:25] offset:%d' % L_H1S)
    a('s_waitcnt lgkmcnt(0)')
    for jp in range(9): a('ds_read_b32 v%d, v9 offset:%d' % (40 + jp, L_H1S + 16 * jp))
    a('s_waitcnt lgkmcnt(0)')
    for jp in range(9):
        lo, hi = wq_pairs[jp]
        for k in range(4):
            a('v_dot2c_f32_bf16 v%d, v%d, v%d' % (16 + 2 * k, 40 + jp, lo[k]))
            a('v_dot2c_f32_bf16 v%d, v%d, v%d' % (17 + 2 * k, 40 + jp, hi[k]))
    red8_g([16 + k for k in range(8)])
    a('v_mov_b32 v18, s44'); a('v_mov_b32 v19, s45')
    a('v_lshlrev_b32 v5, 4, v1')
    a('s_lshl_b32 s15, s8, 10'); a('s_add_u32 s15, s15, 0x%x' % W_QP)
    a('buffer_store_dwordx4 v[16:19], v5, s[48:51], s15 offen sc1')
    stamp(3)
    a('s_lshl_b32 s15, s6, 13'); a('s_add_u32 s15, s15, 0x%x' % W_QP); a('s_add_u32 s46, s15, 4096')
    poll(['buffer_load_dwordx4 v[%d:%d], v5, s[48:51], %s offen offset:%d sc1' % (24 + 4 * k, 27 + 4 * k, 's15' if k < 4 else 's46', (k & 3) * 1024) for k in range(8)],
         tagcheck([24 + 4 * k for k in range(8)]), 'qp')
    for k in range(1, 8):
        a('v_pk_add_f32 v[24:25], v[24:25], v[%d:%d]' % (24 + 4 * k, 25 + 4 * k))
    a('v_cvt_pk_bf16_f32 v24, v24, v25')
    a('v_and_b32 v6, 15, v1'); a('v_lshl_add_u32 v6, v6, 4, v9')
    a('ds_write_b32 v6, v24 offset:%d' % L_QS)
    a('s_waitcnt lgkmcnt(0)')
    a('ds_write_b32 v10, v11 offset:%d' % L_QFLAG)
    stamp(4)
    a('s_cmp_lg_u32 s10, 2')
    a.branch('s_cbranch_scc1 L_t5b')
    a('v_lshlrev_b32 v5, 10, v1')
    for k in range(4): a('s_mov_b32 s%d, 0x%x' % (64 + k, W_QP + k * 65536))
    poll(['buffer_load_dwordx4 v[%d:%d], v5, s[48:51], s%d offen sc1' % (24 + 4 * k, 27 + 4 * k, 64 + k) for k in range(4)],
         tagcheck([24 + 4 * k for k in range(4)]), 'rdy')
    a('v_and_b32 v5, 3, v1'); a('v_lshlrev_b32 v6, 4, v5')
    a('s_lshl_b32 s15, s9, 6'); a('s_add_u32 s15, s15, 0x%x' % (W_MOD + 3 * 4096)); a('s_add_u32 s46, s15, 4096')
    poll(['buffer_load_dwordx4 v[24:27], v6, s[48:51], s15 offen sc1', 'buffer_load_dwordx4 v[28:31], v6, s[48:51], s46 offen sc1'], tagcheck([24, 28]), 'gab')
    a('v_bfe_u32 v6, v1, 3, 1'); a('v_bfe_u32 v7, v1, 2, 1')
    a('v_lshlrev_b32 v5, 2, v5'); a('v_lshl_add_u32 v5, v6, 1, v5'); a('v_add_u32 v5, v5, v7')
    a('v_lshlrev_b32 v63, 2, v5'); a('v_lshlrev_b32 v64, 1, v5')
    srd(64, 16, 17, 1152)
    a('s_lshl_b32 s15, s9, 5')
    a('buffer_load_ushort v60, v64, s[64:67], s15 offen')
    a('v_cmp_eq_u32 vcc, 1, v6'); a('v_cmp_eq_u32 s[12:13], 1, v7')
    for src, dst in ((24, 61), (28, 62)):
        a('v_cndmask_b32 v8, v%d, v%d, vcc' % (src, src + 1))
        a('v_lshlrev_b32 v12, 16, v8'); a('v_and_b32 v8, s78, v8')
        a('v_cndmask_b32 v%d, v12, v8, s[12:13]' % dst)
    a('s_waitcnt vmcnt(0)')
    a('v_lshlrev_b32 v60, 16, v60')
    srd(64, 38, 39, 1152)
    a.branch('s_branch L_t5d')
    a.label('L_t5b')
    a('s_cmp_lg_u32 s10, 1')
    a.branch('s_cbranch_scc1 L_t5d')
    a('v_min_u32 v4, 35, v1'); a('v_lshrrev_b32 v5, 3, v4'); a('v_add_u32 v5, 18, v5'); a('v_and_b32 v4, 7, v4')
    a('v_and_b32 v6, 3, v5'); a('v_lshl_add_u32 v6, v4, 2, v6'); a('v_lshrrev_b32 v5, 2, v5'); a('v_lshl_add_u32 v6, v6, 3, v5')
    a('v_lshlrev_b32 v6, 10, v6'); a('s_mov_b32 s15, 0x%x' % W_QP)
    poll(['buffer_load_dwordx4 v[24:27], v6, s[48:51], s15 offen sc1'], tagcheck([24]), 'rdy2')
    a.label('L_t5d')
    a('v_lshlrev_b32 v5, 4, v1'); a('s_lshl_b32 s15, s6, 10'); a('s_add_u32 s15, s15, 0x%x' % W_ML)
    poll(['buffer_load_dwordx4 v[24:27], v5, s[48:51], s15 offen sc1'], tagcheck([24]), 'ml')
    a('v_mov_b32 v28, v24')
    allred([28], [29], 'v_max_f32')
    a('v_sub_f32 v24, v24, v28'); a('v_mul_f32 v24, 0x%x, v24' % LOG2E); a('v_exp_f32 v24, v24')
    a('v_mul_f32 v25, v25, v24')
    allred([25], [29], 'v_add_f32')
    a('v_rcp_f32 v25, v25')
    a('v_mul_f32 v24, v24, v25')
    a('v_lshrrev_b32 v5, 3, v1'); a('v_cmp_eq_u32 vcc, s7, v5'); a('v_and_b32 v5, 7, v1'); a('v_lshlrev_b32 v5, 2, v5')
    a('s_and_saveexec_b64 s[100:101], vcc')
    a('ds_write_b32 v5, v24 offset:%d' % L_FS)
    a('s_mov_b64 exec, -1')
    a('s_waitcnt lgkmcnt(0)')
    stamp(5)
    a('s_cmp_eq_u32 s10, 1')
    a.branch('s_cbranch_scc1 L_ffn_prep')
    a('s_barrier')
    a('s_cmp_eq_u32 s10, 2')
    a.branch('s_cbranch_scc1 L_reducer')
    endwave(6)

    a.label('L_reducer')
    a('v_lshlrev_b32 v5, 4, v1')
    a('s_lshl_b32 s15, s9, 14'); a('s_add_u32 s15, s15, 0x%x' % W_YS)
    for k in range(4): a('s_add_u32 s%d, s15, %d' % (68 + k, 4096 * k))
    a('v_lshrrev_b32 v6, 4, v1'); a('v_lshl_add_u32 v65, v6, 12, v63')
    a('s_lshl_b32 s46, s9, 6'); a('s_add_u32 s46, s46, 0x%x' % W_XB)
    a('s_barrier')
    stamp(6)
    def gather_sum(nl, soffs, name):
        lp = L(name); dn = L(name + 'd');
        a('s_mov_b32 s14, %d' % POLL_LIMIT)
        a.label(lp)
        for k in range(nl):
            a('buffer_load_dwordx4 v[%d:%d], v5, s[48:51], s%d offen offset:%d sc1' % (96 + 4 * k, 99 + 4 * k, soffs[k >> 2], (k & 3) * 1024))
        a('s_waitcnt vmcnt(%d)' % (nl - 2))
        for hh in (0, 2): a('v_pk_add_f32 v[%d:%d], v[%d:%d], v[%d:%d]' % (16 + hh, 17 + hh, 96 + hh, 97 + hh, 100 + hh, 101 + hh))
        for k in range(2, nl):
            if k % 2 == 0: a('s_waitcnt vmcnt(%d)' % max(0, nl - k - 2))
            for hh in (0, 2): a('v_pk_add_f32 v[%d:%d], v[%d:%d], v[%d:%d]' % (16 + hh, 17 + hh, 16 + hh, 17 + hh, 96 + 4 * k + hh, 97 + 4 * k + hh))
        for k in range(2): a('v_add_f32_dpp v%d, v%d, v%d row_ror:8 row_mask:0xf bank_mask:0x3' % (16 + k, 16 + k, 16 + k))
        for k in range(2): a('v_add_f32_dpp v%d, v%d, v%d row_ror:8 row_mask:0xf bank_mask:0xc' % (16 + k, 18 + k, 18 + k))
        a('v_add_f32_dpp v16, v16, v16 row_shl:4 row_mask:0xf bank_mask:0x5')
        a('v_add_f32_dpp v16, v17, v17 row_shr:4 row_mask:0xf bank_mask:0xa')
        for sw in ('v_permlane16_swap_b32', 'v_permlane32_swap_b32'):
            a('v_mov_b32 v17, v16'); a('%s v16, v17' % sw); a('v_add_f32 v16, v16, v17')
        a('v_cmp_u_f32 vcc, v16, v16')
        a('s_cmp_eq_u64 vcc, 0')
        a.branch('s_cbranch_scc1 ' + dn)
        a('v_max3_u32 v17, v96, v97, v98')
        for k in range(99, 96 + 4 * nl - 1, 2): a('v_max3_u32 v17, v17, v%d, v%d' % (k, k + 1))
        a('v_max_u32 v17, v17, v%d' % (96 + 4 * nl - 1))
        a('v_cmp_eq_u32 vcc, -1, v17')
        a('s_cmp_eq_u64 vcc, 0')
        a.branch('s_cbranch_scc1 ' + dn)
        a('s_sub_u32 s14, s14, 1')
        a.branch('s_cbranch_scc0 ' + lp)
        a.label(dn)
    gather_sum(16, [68, 69, 70, 71], 'ys')
    stamp(7)
    rnd1(16); a('v_mul_f32 v16, v16, v61'); rnd1(16); a('v_add_f32 v60, v60, v16'); rnd1(60)
    for i in range(4):
        a('buffer_store_dword v60, v65, s[48:51], s46 offen sc1')
        if i < 3: a('s_add_u32 s46, s46, 16384')
    a('s_mul_i32 s15, s9, 9216'); a('s_add_u32 s15, s15, 0x%x' % W_DS)
    for k in range(3): a('s_add_u32 s%d, s15, %d' % (68 + k, 4096 * k))
    gather_sum(9, [68, 69, 70], 'ds')
    stamp(8)
    rnd1(16); a('v_mul_f32 v16, v16, v62'); rnd1(16); a('v_add_f32 v16, v60, v16')
    a('v_cvt_pk_bf16_f32 v16, v16, v16')
    a('s_lshl_b32 s15, s9, 5')
    a('s_mov_b64 exec, 0xffff')
    a('buffer_store_short v16, v64, s[64:67], s15 offen')
    a('s_cmp_lg_u32 s9, 0')
    a.branch('s_cbranch_scc1 L_red_end')
    a('v_mov_b32 v18, s44'); a('v_mov_b32 v19, s45')
    a('s_mov_b64 exec, 1')
    a('buffer_store_dwordx2 v[18:19], v10, s[48:51], 0 offen')
    a.label('L_red_end')
    endwave(9)

    a.label('L_ffn_prep')
    a('s_cmp_eq_u32 s10, 1')
    a.branch('s_cbranch_scc1 L_ffn_go')
    endwave(5)
    a.label('L_ffn_go')
    a('s_lshr_b32 s79, s11, 1')
    a('s_and_b32 s12, s11, 1'); a('s_cmp_eq_u32 s12, 0'); a('s_cselect_b32 s12, s28, s30'); a('s_cselect_b32 s13, s29, s31')
    a('s_lshl_b32 s15, s9, 6')
    srd_off(52, 12, 13, 15, 576 * 9216)
    a('s_mul_i32 s15, s9, 36864'); a('s_mul_i32 s12, s11, 9216'); a('s_add_u32 s15, s15, s12')
    srd_off(56, 32, 33, 15, 4608 * 1152)
    a('v_lshrrev_b32 v4, 2, v1'); a('v_and_b32 v5, 3, v1'); a('v_lshlrev_b32 v5, 4, v5')
    a('s_mov_b32 s12, %d' % (16 * 9216)); a('v_mul_lo_u32 v2, s12, v4'); a('v_add_u32 v2, v2, v5')
    a('s_mul_i32 s12, s79, %d' % (256 * 9216)); a('v_add_u32 v2, s12, v2')
    a('v_mul_u32_u24 v3, %d, v4' % (2 * 9216)); a('v_add_u32 v3, v3, v5')
    a('s_mul_i32 s12, s79, %d' % (32 * 9216)); a('s_add_u32 s12, s12, %d' % (512 * 9216)); a('v_add_u32 v3, s12, v3')
    a('v_lshrrev_b32 v6, 5, v1'); a('v_mul_u32_u24 v6, 4608, v6'); a('v_and_b32 v7, 31, v1')
    a('v_lshl_add_u32 v8, v7, 4, v6'); a('v_lshl_add_u32 v9, v7, 2, v6'); a('v_add_u32 v9, 1024, v9')
    a('v_lshlrev_b32 v12, 4, v1'); a('v_lshrrev_b32 v13, 3, v1'); a('v_lshlrev_b32 v13, 4, v13')
    a('s_lshl_b32 s64, s79, 10'); a('s_add_u32 s64, s64, 0x%x' % (W_MOD + 4096)); a('s_add_u32 s65, s64, 4096')
    a('s_lshl_b32 s66, s79, 7'); a('s_add_u32 s66, s66, 0x%x' % (W_MOD + 4096 + 2048)); a('s_add_u32 s67, s66, 4096')
    poll(['buffer_load_dwordx4 v[24:27], v12, s[48:51], s64 offen sc1', 'buffer_load_dwordx4 v[28:31], v12, s[48:51], s65 offen sc1',
          'buffer_load_dwordx4 v[32:35], v13, s[48:51], s66 offen sc1', 'buffer_load_dwordx4 v[36:39], v13, s[48:51], s67 offen sc1'],
         tagcheck([24, 28, 32, 36]), 'sbcb')
    a('v_and_b32 v14, 1, v4'); a('v_cmp_eq_u32 vcc, 1, v14')
    a('v_cndmask_b32 v26, v32, v33, vcc'); a('v_cndmask_b32 v30, v36, v37, vcc')
    for k in range(3):
        a('v_lshlrev_b32 v%d, 16, v%d' % (40 + 2 * k, 24 + k)); a('v_and_b32 v%d, s78, v%d' % (41 + 2 * k, 24 + k))
        a('v_lshlrev_b32 v%d, 16, v%d' % (46 + 2 * k, 28 + k)); a('v_and_b32 v%d, s78, v%d' % (47 + 2 * k, 28 + k))
    a('s_lshl_b32 s12, s4, 1'); a('s_and_b32 s13, s5, 1'); a('s_add_u32 s12, s12, s13'); a('s_lshl_b32 s12, s12, 12'); a('s_add_u32 s68, s12, 0x%x' % W_XB)
    a('s_lshl_b32 s12, s79, 10'); a('s_add_u32 s64, s68, s12'); a('s_xor_b32 s12, s12, 1024'); a('s_add_u32 s65, s68, s12')
    a('s_lshl_b32 s12, s79, 7'); a('s_add_u32 s66, s68, s12')
    a('v_lshlrev_b32 v13, 2, v1'); a('v_lshlrev_b32 v14, 3, v4')
    a('v_and_b32 v15, 3, v1'); a('v_lshlrev_b32 v15, 3, v15'); a('v_lshrrev_b32 v5, 4, v1'); a('v_lshl_add_u32 v15, v5, 1, v15')
    a('v_bfe_u32 v5, v1, 3, 1'); a('v_add_u32 v15, v15, v5'); a('v_lshlrev_b32 v15, 2, v15'); a('s_lshl_b32 s12, s11, 7'); a('v_add_u32 v15, s12, v15')
    a('v_lshrrev_b32 v5, 5, v1'); a('v_lshlrev_b32 v5, 2, v5'); a('v_and_b32 v52, 3, v1'); a('v_add_u32 v52, v52, v5'); a('v_lshlrev_b32 v52, 2, v52')
    a('s_lshl_b32 s12, s11, 5'); a('s_add_u32 s12, s12, %d' % L_GU); a('v_add_u32 v52, s12, v52')
    a('v_lshrrev_b32 v5, 5, v1'); a('v_lshl_add_u32 v5, v7, 1, v5'); a('s_mul_i32 s12, s11, 2304')
    a('v_lshlrev_b32 v53, 4, v5'); a('v_add_u32 v53, s12, v53'); a('v_lshlrev_b32 v54, 2, v5'); a('v_add_u32 v54, s12, v54')
    vm = VM(a)
    stamp(6)
    if P['trig'] >= 0: ldsflag_wait(L_TRIG, 10, 55, 8)
    def gu_loads():
        for t in range(18):
            if t < 16:
                a('s_mov_b32 s15, %d' % (t * 9216)); vo = 2
            else:
                a('s_mov_b32 s15, %d' % ((t - 16) * 9216)); vo = 3
            vm.issue('g', 'buffer_load_dwordx4 v[%d:%d], v%d, s[52:55], s15 offen%s' % (96 + 4 * t, 99 + 4 * t, vo, WNT))
    def dn_loads():
        for r in range(4):
            vm.issue('d', 'buffer_load_dwordx4 v[%d:%d], v8, s[56:59], 0 offen offset:%d%s' % (56 + 8 * r, 59 + 8 * r, r * 1152, WNT))
            vm.issue('d', 'buffer_load_dwordx4 v[%d:%d], v8, s[56:59], 0 offen offset:%d%s' % (60 + 8 * r, 63 + 8 * r, r * 1152 + 512, WNT))
            vm.issue('d', 'buffer_load_dword v%d, v9, s[56:59], 0 offen offset:%d%s' % (88 + r, r * 1152, WNT))
    if P['trig'] >= 0: gu_loads()
    if P['trig2'] >= 0:
        ldsflag_wait(L_TRIG2, 10, 55, 8); dn_loads()
    a('s_barrier')
    if P['trig'] < 0: gu_loads()
    if P['trig2'] < 0: dn_loads()
    a('s_barrier')
    stamp(7)
    vm.wait_tag('g')
    spare = 55
    gp = []
    for tp in range(9):
        A = [96 + 8 * tp + k for k in range(4)]; B = [100 + 8 * tp + k for k in range(4)]
        lo, hi, spare = pairperm(A, B, spare)
        gp.append((lo, hi))
    vm.wait_tag('d')
    dp = []
    for rp in range(2):
        A = [56 + 16 * rp + k for k in range(8)] + [88 + 2 * rp]; B = [64 + 16 * rp + k for k in range(8)] + [89 + 2 * rp]
        lo, hi, spare = pairperm(A, B, spare)
        dp.append((lo, hi))
    for k in range(8): a('v_mov_b32 v%d, 0' % (16 + k))
    sum_publish(4, L_DPART, W_DS, 9216, 9, 11)
    def xbcheck():
        a('v_max3_u32 v35, v24, v25, v26'); a('v_max3_u32 v35, v35, v27, v28'); a('v_max3_u32 v35, v35, v29, v30')
        a('v_max3_u32 v35, v35, v31, v32'); a('v_max3_u32 v35, v35, v34, v33'); a('v_max_u32 v35, v35, v36')
        a('v_cmp_eq_u32 vcc, -1, v35')
    poll(['buffer_load_dwordx4 v[24:27], v12, s[48:51], s64 offen sc1', 'buffer_load_dwordx4 v[28:31], v12, s[48:51], s65 offen sc1',
          'buffer_load_dword v36, v13, s[48:51], s68 offen offset:2048 sc1', 'buffer_load_dwordx2 v[32:33], v14, s[48:51], s66 offen offset:2048 sc1',
          'v_mov_b32 v34, 0'], xbcheck, 'xb')
    stamp(8)
    ln_stats([24, 25, 26, 27, 28, 29, 30, 31, 36], 34, 35, 37, 38)
    ln_apply([(24, 25, 46, 47, 40, 41, 28), (26, 27, 48, 49, 42, 43, 29), (32, 33, 50, 51, 44, 45, 30)], 34, 35, 37)
    for tp in range(9):
        lo, hi = gp[tp]
        for k in range(4):
            for acc, w in ((16 + 2 * k, lo[k]), (17 + 2 * k, hi[k])):
                if tp < 8:
                    q = tp >> 1
                    a('v_dot2c_f32_bf16_dpp v%d, v%d, v%d quad_perm:[%d,%d,%d,%d] row_mask:0xf bank_mask:0xf' % (acc, 28 + (tp & 1), w, q, q, q, q))
                else:
                    a('v_dot2c_f32_bf16 v%d, v30, v%d' % (acc, w))
    red8_g([16 + k for k in range(8)])
    a('v_add_f32_dpp v16, v16, v16 row_ror:8 row_mask:0xf bank_mask:0x3')
    a('v_add_f32_dpp v16, v17, v17 row_ror:8 row_mask:0xf bank_mask:0xc')
    a('v_add_f32_dpp v16, v16, v16 row_shl:4 row_mask:0xf bank_mask:0x5')
    a('s_mov_b32 exec_lo, 0x0f0f0f0f'); a('s_mov_b32 exec_hi, 0x0f0f0f0f')
    a('ds_write_b32 v15, v16 offset:%d' % L_GU)
    a('s_mov_b64 exec, -1')
    Y = list(range(24, 42))
    for y in Y: a('v_mov_b32 v%d, 0' % y)
    a('s_waitcnt lgkmcnt(0)')
    a('s_barrier')
    a('ds_read2_b32 v[16:17], v52 offset0:0 offset1:64')
    a('ds_read2_b32 v[18:19], v52 offset0:32 offset1:96')
    a('s_waitcnt lgkmcnt(0)')
    a('v_add_f32 v16, v16, v17'); a('v_add_f32 v18, v18, v19')
    rnd2(16, 18, 17)
    silu([16], [17])
    rnd1(16)
    a('v_mul_f32 v16, v16, v18')
    a('v_mov_b32_dpp v17, v16 quad_perm:[1,1,3,3] row_mask:0xf bank_mask:0xf')
    a('v_cvt_pk_bf16_f32 v16, v16, v17')
    for rp in range(2):
        lo, hi = dp[rp]; q = 2 * rp
        for k in range(9):
            a('v_dot2c_f32_bf16_dpp v%d, v16, v%d quad_perm:[%d,%d,%d,%d] row_mask:0xf bank_mask:0xf' % (Y[2 * k], lo[k], q, q, q, q))
            a('v_dot2c_f32_bf16_dpp v%d, v16, v%d quad_perm:[%d,%d,%d,%d] row_mask:0xf bank_mask:0xf' % (Y[2 * k + 1], hi[k], q, q, q, q))
    half_reduce_write(Y, 53, 54, L_DPART)
    a('s_waitcnt lgkmcnt(0)')
    a('s_barrier')
    a('s_cmp_ge_u32 s11, 3')
    a.branch('s_cbranch_scc1 L_ffn_end')
    sum_publish2(4, L_DPART)
    a.label('L_ffn_end')
    endwave(9)
    a.label('L_exit')
    a('s_endpgm')

    head = open('adaLN_cond__mha_block_cached__swiglu_ffn__decode.s.ref').read().split('\n')
    hdr = [l for l in head if l.startswith(';') and '@launch' not in l and 'Override launch' not in l and 'grid=ceil' not in l]
    out = '\n'.join(hdr) + '\n'
    out += '; generated by gen.py params: %s\n' % json.dumps(P, sort_keys=True)
    out += '; @launch grid=(256,1,1) block=(768,1,1) lds=%d\n' % L_SIZE
    out += '.amdgcn_target "amdgcn-amd-amdhsa--gfx950"\n.text\n.globl %s\n.p2align 8\n.type %s,@function\n' % (KNAME, KNAME)
    out += a.text()
    assert a.maxv < 168, a.maxv
    out += '''.section .rodata,"a"
.p2align 6
.amdhsa_kernel %s
  .amdhsa_next_free_vgpr 168
  .amdhsa_next_free_sgpr 102
  .amdhsa_accum_offset 168
  .amdhsa_group_segment_fixed_size 0
  .amdhsa_kernarg_size 112
  .amdhsa_user_sgpr_count 2
  .amdhsa_user_sgpr_kernarg_segment_ptr 1
  .amdhsa_system_sgpr_workgroup_id_x 1
  .amdhsa_float_denorm_mode_32 3
.end_amdhsa_kernel
''' % KNAME
    return out

if __name__ == '__main__':
    kw = {}
    outp = sys.argv[1]
    for x in sys.argv[2:]:
        k, v = x.split('='); kw[k] = int(v)
    open(outp, 'w').write(gen(**kw))
```

```python
import sys, json
from asmlib import Asm, VM

KNAME = 'adaLN_cond__mha_block_cached__swiglu_ffn__decode_kernel'

W_MODP = 0x1000
W_MOD = 0xA000
W_RDYA = 0xE000
W_RDYB = 0xF000
W_QP = 0x10000
W_ML = 0x50000
W_OX = 0x60000
W_YS = 0x80000
YSC = 18432
W_DS = 0x100000
W_DIAG = 0x200000
W_SIZE = 0x400000
L_QFLAG = 0; L_TRIG = 4; L_FSFLAG = 8; L_OCNT = 12; L_MCNT = 16
L_QS = 64; L_FS = 320; L_H1S = 384; L_MPART = 9728
L_OPART = 1024; L_X2 = 5120; L_GU = 7680; L_WPART = 9728; L_DPART = 11264
L_SIZE = 11264 + 8 * 2304
DSR = 4608
NTAB = [[27,27,27,35,35,34,35,36],[26,26,33,33,33,33,36,36],[26,26,33,33,33,33,36,36],[26,26,33,33,33,35,35,35]]
LOG2E = 0x3fb8aa3b
SCALE = 0x3db504f3
INV576 = 0x3ae38e39
EPS = 0x3727c5ac
POLL_LIMIT = 400000

DEF = dict(diag=0, N=4, N0=2, N1=4, interleave=1, kv_nt=1, w_nt=1, trig=64, sleep=0, mlsleep=8, nslots=36, early_v=4, prio=3, wN=8, so=0, bprio=1, Nend=0, endk=12, h1sleep=4, qpsleep=4, qp0=4, fN=8, vgap=1, b0e=1, yssleep=0, oxsleep=0, fprio=0, abl=0, noclr=0, nowq=0, fonly=0)

def gen(**kw):
    P = dict(DEF); P.update(kw)
    a = Asm()
    DIAG = P['diag']
    NT = ' nt' if P['kv_nt'] else ''
    WNT = ' nt' if P['w_nt'] else ''
    uid = [0]
    def L(n):
        uid[0] += 1
        return 'L_%s_%d' % (n, uid[0])
    def stamp(k):
        if DIAG: a('s_memrealtime s[%d:%d]' % (80 + 2 * k, 81 + 2 * k))
    def srd(d, lo, hi, size):
        a('s_mov_b32 s%d, s%d' % (d, lo)); a('s_mov_b32 s%d, s%d' % (d + 1, hi))
        a('s_mov_b32 s%d, 0x%x' % (d + 2, size)); a('s_mov_b32 s%d, 0x00020000' % (d + 3))
    def srd_off(d, lo, hi, off_sreg, size_total):
        a('s_add_u32 s%d, s%d, s%d' % (d, lo, off_sreg)); a('s_addc_u32 s%d, s%d, 0' % (d + 1, hi))
        a('s_sub_u32 s%d, 0x%x, s%d' % (d + 2, size_total, off_sreg)); a('s_mov_b32 s%d, 0x00020000' % (d + 3))
    def endwave(nst):
        if DIAG:
            stamp(9)
            a('s_waitcnt lgkmcnt(0)')
            a('s_mov_b64 exec, -1')
            a('v_mov_b32 v2, 0')
            for k in range(10):
                a('v_writelane_b32 v2, s%d, %d' % (80 + 2 * k, k))
            a('s_getreg_b32 s12, hwreg(HW_REG_XCC_ID)')
            a('v_writelane_b32 v2, s12, 10')
            a('s_getreg_b32 s12, hwreg(HW_REG_HW_ID)')
            a('v_writelane_b32 v2, s12, 11')
            a('s_mul_i32 s12, s2, 12'); a('s_add_u32 s12, s12, s3'); a('s_lshl_b32 s12, s12, 6')
            a('s_add_u32 s12, s12, 0x%x' % W_DIAG)
            a('v_lshlrev_b32 v3, 2, v1')
            a('s_mov_b64 exec, 0xffff')
            a('buffer_store_dword v2, v3, s[48:51], s12 offen')
        a('s_endpgm')
    def poll(loads, check, name):
        lp = L(name); dn = L(name + 'd')
        a('s_mov_b32 s14, %d' % POLL_LIMIT)
        a.label(lp)
        for t in loads: a(t)
        a('s_waitcnt vmcnt(0)')
        check()
        a('s_cmp_eq_u64 vcc, 0')
        a.branch('s_cbranch_scc1 ' + dn)
        if P['sleep']: a('s_sleep %d' % P['sleep'])
        a('s_sub_u32 s14, s14, 1')
        a.branch('s_cbranch_scc0 ' + lp)
        a.label(dn)
    def tagcheck(regs):
        def f():
            a('v_cmp_ne_u64 vcc, s[44:45], v[%d:%d]' % (regs[0] + 2, regs[0] + 3))
            for r in regs[1:]:
                a('v_cmp_ne_u64 s[12:13], s[44:45], v[%d:%d]' % (r + 2, r + 3))
                a('s_or_b64 vcc, vcc, s[12:13]')
        return f
    def ldsflag_wait(off, vz, vt, sleep):
        lp = L('fw')
        a.label(lp)
        a('ds_read_b32 v%d, v%d offset:%d' % (vt, vz, off))
        a('s_waitcnt lgkmcnt(0)')
        a('v_readfirstlane_b32 s12, v%d' % vt)
        a('s_cmp_lg_u32 s12, 0')
        dn = L('fwd')
        a.branch('s_cbranch_scc1 ' + dn)
        a('s_sleep %d' % sleep)
        a.branch('s_branch ' + lp)
        a.label(dn)
    def allred(regs, tmps, op):
        for sh in (8, 4, 2, 1):
            for r in regs: a('%s_dpp v%d, v%d, v%d row_ror:%d row_mask:0xf bank_mask:0xf' % (op, r, r, r, sh))
        for sw in ('v_permlane16_swap_b32', 'v_permlane32_swap_b32'):
            for r, t in zip(regs, tmps): a('v_mov_b32 v%d, v%d' % (t, r))
            for r, t in zip(regs, tmps): a('%s v%d, v%d' % (sw, r, t))
            for r, t in zip(regs, tmps): a('%s v%d, v%d, v%d' % (op, r, r, t))
    def red8_g(acc):
        for k in range(4): a('v_permlane32_swap_b32 v%d, v%d' % (acc[k], acc[k + 4]))
        for k in range(4): a('v_add_f32 v%d, v%d, v%d' % (acc[k], acc[k], acc[k + 4]))
        for k in range(2): a('v_permlane16_swap_b32 v%d, v%d' % (acc[k], acc[k + 2]))
        for k in range(2): a('v_add_f32 v%d, v%d, v%d' % (acc[k], acc[k], acc[k + 2]))
    def pairperm(A, B, spare):
        lo = []; hi = []
        for x, y in zip(A, B):
            a('v_perm_b32 v%d, v%d, v%d, s76' % (spare, y, x))
            a('v_perm_b32 v%d, v%d, v%d, s77' % (y, y, x))
            lo.append(spare); hi.append(y); spare = x
        return lo, hi, spare
    def rnd2(x, y, t):
        a('v_cvt_pk_bf16_f32 v%d, v%d, v%d' % (t, x, y))
        a('v_lshlrev_b32 v%d, 16, v%d' % (x, t))
        a('v_and_b32 v%d, s78, v%d' % (y, t))
    def rnd1(x):
        a('v_cvt_pk_bf16_f32 v%d, v%d, v%d' % (x, x, x))
        a('v_and_b32 v%d, s78, v%d' % (x, x))
    def ln_stats(xs, s1, s2, t1, t2):
        a('v_mul_f32 v%d, v%d, v%d' % (s2, xs[0], xs[0]))
        a('v_add_f32 v%d, v%d, v%d' % (s1, xs[0], xs[1]))
        a('v_fmac_f32 v%d, v%d, v%d' % (s2, xs[1], xs[1]))
        for x in xs[2:]:
            a('v_add_f32 v%d, v%d, v%d' % (s1, s1, x))
            a('v_fmac_f32 v%d, v%d, v%d' % (s2, x, x))
        allred([s1, s2], [t1, t2], 'v_add_f32')
        a('v_mul_f32 v%d, 0x%x, v%d' % (s1, INV576, s1))
        a('v_mul_f32 v%d, 0x%x, v%d' % (s2, INV576, s2))
        a('v_fma_f32 v%d, -v%d, v%d, v%d' % (s2, s1, s1, s2))
        a('v_max_f32 v%d, 0, v%d' % (s2, s2))
        rnd2(s1, s2, t1)
        a('v_add_f32 v%d, 0x%x, v%d' % (s2, EPS, s2))
        rnd1(s2)
        a('v_sqrt_f32 v%d, v%d' % (s2, s2))
        rnd1(s2)
        a('v_rcp_f32 v%d, v%d' % (s2, s2))
    def ln_apply(pairs, mean, rs, t):
        for (x0, x1, c0, c1, s0, s1, o) in pairs:
            a('v_sub_f32 v%d, v%d, v%d' % (x0, x0, mean)); a('v_sub_f32 v%d, v%d, v%d' % (x1, x1, mean))
        for (x0, x1, c0, c1, s0, s1, o) in pairs: rnd2(x0, x1, o)
        for (x0, x1, c0, c1, s0, s1, o) in pairs:
            a('v_mul_f32 v%d, v%d, v%d' % (x0, x0, rs)); a('v_mul_f32 v%d, v%d, v%d' % (x1, x1, rs))
        for (x0, x1, c0, c1, s0, s1, o) in pairs: rnd2(x0, x1, o)
        for (x0, x1, c0, c1, s0, s1, o) in pairs:
            a('v_mul_f32 v%d, v%d, v%d' % (x0, x0, c0)); a('v_mul_f32 v%d, v%d, v%d' % (x1, x1, c1))
        for (x0, x1, c0, c1, s0, s1, o) in pairs: rnd2(x0, x1, o)
        for (x0, x1, c0, c1, s0, s1, o) in pairs:
            a('v_add_f32 v%d, v%d, v%d' % (x0, x0, s0)); a('v_add_f32 v%d, v%d, v%d' % (x1, x1, s1))
        for (x0, x1, c0, c1, s0, s1, o) in pairs: a('v_cvt_pk_bf16_f32 v%d, v%d, v%d' % (o, x0, x1))
    def silu(xs, ts):
        for x, t in zip(xs, ts): a('v_mul_f32 v%d, 0x%x, v%d' % (t, LOG2E ^ 0x80000000, x))
        for x, t in zip(xs, ts): a('v_exp_f32 v%d, v%d' % (t, t))
        for x, t in zip(xs, ts): a('v_add_f32 v%d, 1.0, v%d' % (t, t))
        for x, t in zip(xs, ts): a('v_rcp_f32 v%d, v%d' % (t, t))
        for x, t in zip(xs, ts): a('v_mul_f32 v%d, v%d, v%d' % (x, x, t))
    def sum_publish(nparts, lbase, wsbase, rstride, idreg, wv):
        a('s_mul_i32 s12, s%d, 48' % wv)
        a('v_add_u32 v4, s12, v1')
        a('v_lshlrev_b32 v5, 4, v4')
        a('v_lshrrev_b32 v6, 2, v4')
        a('s_mov_b32 s13, %d' % rstride)
        a('v_mul_lo_u32 v6, s13, v6')
        a('v_and_b32 v7, 3, v4')
        a('v_lshl_add_u32 v6, v7, 4, v6')
        a('s_lshl_b32 s12, s%d, 6' % idreg)
        a('s_add_u32 s15, s12, 0x%x' % wsbase)
    def sum_publish2(nparts, lbase):
        a('s_mov_b32 exec_lo, -1'); a('s_mov_b32 exec_hi, 0xffff')
        for k in range(nparts):
            a('ds_read_b128 v[%d:%d], v5 offset:%d' % (24 + 4 * k, 27 + 4 * k, lbase + k * 2304))
        n = nparts; step = 1
        a('s_waitcnt lgkmcnt(0)')
        while step < nparts:
            for k in range(0, nparts, 2 * step):
                for hh in (0, 2):
                    x = 24 + 4 * k + hh; y = 24 + 4 * (k + step) + hh
                    a('v_pk_add_f32 v[%d:%d], v[%d:%d], v[%d:%d]' % (x, x + 1, x, x + 1, y, y + 1))
            step *= 2
        for k in range(4): a('v_min_u32 v%d, -2, v%d' % (24 + k, 24 + k))
        a('buffer_store_dwordx4 v[24:27], v6, s[48:51], s15 offen sc1')

    def poll2(loads, check, name, filler=None, sleep=0):
        lp = L(name); dn = L(name + 'd'); wt = L(name + 'w')
        a('s_mov_b32 s14, %d' % POLL_LIMIT)
        if filler:
            for t in loads: a(t)
            filler()
            a.branch('s_branch ' + wt)
        a.label(lp)
        for t in loads: a(t)
        if filler: a.label(wt)
        a('s_waitcnt vmcnt(0)')
        check()
        a('s_cmp_eq_u64 vcc, 0')
        a.branch('s_cbranch_scc1 ' + dn)
        if sleep: a('s_sleep %d' % sleep)
        a('s_sub_u32 s14, s14, 1')
        a.branch('s_cbranch_scc0 ' + lp)
        a.label(dn)
    def ldscnt_wait(off, vz, vt, minval, sleep):
        lp = L('cw'); dn = L('cwd')
        a.label(lp)
        a('ds_read_b32 v%d, v%d offset:%d' % (vt, vz, off))
        a('s_waitcnt lgkmcnt(0)')
        a('v_readfirstlane_b32 s12, v%d' % vt)
        a('s_cmp_ge_u32 s12, %d' % minval)
        a.branch('s_cbranch_scc1 ' + dn)
        a('s_sleep %d' % sleep)
        a.branch('s_branch ' + lp)
        a.label(dn)
    def tree_add4(bases):
        step = 1; n = len(bases)
        while step < n:
            for k in range(0, n, 2 * step):
                for hh in (0, 2):
                    x = bases[k] + hh; y = bases[k + step] + hh
                    a('v_pk_add_f32 v[%d:%d], v[%d:%d], v[%d:%d]' % (x, x + 1, x, x + 1, y, y + 1))
            step *= 2
    def half_reduce_write(Y, vA, vC, lbase):
        prs = [(Y[k], Y[k + 4]) for k in range(4)] + [(Y[8 + k], Y[12 + k]) for k in range(4)] + [(Y[16], Y[17])]
        for x, y in prs: a('v_permlane32_swap_b32 v%d, v%d' % (x, y))
        for x, y in prs: a('v_add_f32 v%d, v%d, v%d' % (x, x, y))
        a('ds_write_b128 v%d, v[%d:%d] offset:%d' % (vA, Y[0], Y[0] + 3, lbase))
        a('ds_write_b128 v%d, v[%d:%d] offset:%d' % (vA, Y[8], Y[8] + 3, lbase + 1024))
        a('ds_write_b32 v%d, v%d offset:%d' % (vC, Y[16], lbase + 2048))
    def tag_ready():
        a('s_waitcnt lgkmcnt(0)')
        a('s_add_u32 s44, s44, 0x7f4a7c15'); a('s_addc_u32 s45, s45, 0x9e3779b9')

    a.raw(KNAME + ':')
    a('s_cmp_ge_u32 s2, 256')
    a.branch('s_cbranch_scc1 L_exit')
    a('s_load_dwordx16 s[16:31], s[0:1], 0')
    a('s_load_dwordx8 s[32:39], s[0:1], 64')
    a('s_load_dwordx4 s[40:43], s[0:1], 96')
    if DIAG:
        for k in range(80, 100): a('s_mov_b32 s%d, 0' % k)
    stamp(0)
    a('v_lshrrev_b32 v2, 6, v0')
    a('v_and_b32 v1, 63, v0')
    a('v_readfirstlane_b32 s3, v2')
    a('s_and_b32 s4, s2, 7')
    a('s_lshr_b32 s5, s2, 3')
    a('s_and_b32 s6, s5, 3'); a('s_lshl_b32 s12, s4, 2'); a('s_add_u32 s6, s6, s12')
    a('s_lshr_b32 s7, s5, 2')
    a('s_lshl_b32 s8, s6, 3'); a('s_add_u32 s8, s8, s7')
    a('s_mov_b32 s72, 0xcccccccc'); a('s_mov_b32 s73, 0xcccccccc')
    a('s_mov_b32 s74, 0xaaaaaaaa'); a('s_mov_b32 s75, 0xaaaaaaaa')
    a('s_mov_b32 s76, 0x05040100'); a('s_mov_b32 s77, 0x07060302'); a('s_mov_b32 s78, 0xffff0000')
    a('v_mov_b32 v10, 0'); a('v_mov_b32 v11, 1')
    a('v_lshlrev_b32 v4, 4, v1'); a('v_lshlrev_b32 v2, 2, v1')
    a('s_cmp_lg_u32 s3, 8')
    a.branch('s_cbranch_scc1 L_noinit')
    a('s_mov_b64 exec, 0xff')
    a('ds_write_b32 v2, v10 offset:0')
    a('s_mov_b64 exec, -1')
    a.label('L_noinit')
    a('s_cmp_ge_u32 s3, 8')
    a.branch('s_cbranch_scc1 L_helper')

    starts = [[sum(NTAB[j][:sp]) for sp in range(8)] for j in range(4)]
    for j in range(4): assert sum(NTAB[j]) == 256
    for sp in range(8):
        a('s_mov_b32 s%d, 0x%x' % (56 + sp, sum(starts[j][sp] << (8 * j) for j in range(4))))
        a('s_mov_b32 s%d, 0x%x' % (64 + sp, sum(NTAB[j][sp] << (8 * j) for j in range(4))))
    a('s_mov_b32 m0, s7')
    a('s_and_b32 s14, s5, 3'); a('s_lshl_b32 s14, s14, 3')
    a('s_movrels_b32 s12, s56'); a('s_movrels_b32 s9, s64')
    a('s_lshr_b32 s12, s12, s14'); a('s_and_b32 s12, s12, 0xff'); a('s_lshr_b32 s9, s9, s14'); a('s_and_b32 s9, s9, 0xff')
    a('s_lshl_b32 s12, s12, 13'); a('s_lshl_b32 s13, s6, 21'); a('s_add_u32 s12, s12, s13')
    a('s_lshl_b32 s13, s3, 10')
    a('v_add_u32 v2, s13, v4')
    a('s_lshl_b32 s54, s9, 13'); a('s_mov_b32 s55, 0x00020000')
    a('s_waitcnt lgkmcnt(0)')
    if P['b0e']: a('s_barrier')
    a('s_load_dwordx2 s[44:45], s[42:43], 0')
    a('s_add_u32 s52, s18, s12'); a('s_addc_u32 s53, s19, 0')
    a('s_cmp_lt_u32 s5, 9')
    a.branch('s_cbranch_scc1 L_attF')
    STEP = 8192
    NS = 36
    sreg = lambda s: 24 + 4 * s
    def attention(R, ffn):
        vm = VM(a)
        free = list(range(NS))
        kslot = {}; vslot = {}
        NN = [P['N1']]
        nb = (R + 15) // 16
        for j in range(4):
            for sp in range(8):
                if ((4 * sp + j) < 9) == ffn: assert 16 * (nb - 1) < NTAB[j][sp] <= R
        def ld_kv(kind, j):
            s = free.pop(0)
            (kslot if kind == 'K' else vslot)[j] = s
            vm.throttle(NN[0])
            a('s_mov_b32 s11, 0x%x' % (j * STEP))
            vm.issue((kind, j), 'buffer_load_dwordx4 v[%d:%d], v2, s[%d:%d], s11 offen%s' % (sreg(s), sreg(s) + 3, *((52, 55) if kind == 'K' else (56, 59)), NT))
        for j in range(P['N0']): ld_kv('K', j)
        a('s_add_u32 s56, s20, s12'); a('s_addc_u32 s57, s21, 0'); a('s_mov_b32 s58, s54'); a('s_mov_b32 s59, s55')
        srd(48, 42, 43, W_SIZE)
        a('s_sub_u32 s13, s9, %d' % (16 * (nb - 1))); a('s_bfm_b32 s60, s13, 0'); a('s_mul_i32 s60, s60, 0x10001'); a('s_mov_b32 s61, s60')
        for k in range(8): a('v_mov_b32 v%d, 0' % (16 + k))
        a('v_and_b32 v3, 15, v1'); a('v_lshlrev_b32 v13, 4, v3'); a('v_lshlrev_b32 v3, 5, v3'); a('v_lshrrev_b32 v5, 4, v1')
        a('v_lshl_add_u32 v3, v5, 3, v3'); a('s_lshl_b32 s12, s3, 9'); a('v_add_u32 v3, s12, v3')
        a('s_lshl_b32 s15, s8, 9'); a('s_add_u32 s15, s15, 0x%x' % W_OX)
        if not P['b0e']: a('s_barrier')
        for j in range(P['N0'], R): ld_kv('K', j)
        EV = min(P['early_v'], NS - R)
        for j in range(EV): ld_kv('V', j)
        stamp(1)
        tag_ready()
        ldsflag_wait(L_QFLAG, 10, 12, 2)
        a('ds_read_b128 v[12:15], v13 offset:%d' % L_QS)
        a('s_waitcnt lgkmcnt(0)')
        stamp(2)
        NN[0] = P['N']
        S = [6, 7, 0][:nb]; PH = [8, 9, 5][:nb]
        def kbatch(b):
            n = min(16, R - 16 * b)
            X = [sreg(kslot[16 * b + j]) for j in range(n)]
            for g in range(0, n, 4):
                js = list(range(g, min(n, g + 4)))
                vm.wait_tag(('K', 16 * b + js[-1]))
                for k in range(4):
                    for j in js:
                        a('v_dot2_f32_bf16 v%d, v%d, v%d, %s' % (X[j], X[j] + k, 12 + k, '0' if k == 0 else 'v%d' % X[j]))
            for i in range(min(n, 8)): a('v_add_f32_dpp v%d, v%d, v%d row_ror:8 row_mask:0xf bank_mask:0x3' % (X[i], X[i], X[i]))
            for i in range(8):
                if i + 8 < n: a('v_add_f32_dpp v%d, v%d, v%d row_ror:8 row_mask:0xf bank_mask:0xc' % (X[i], X[i + 8], X[i + 8]))
            for i in range(min(n, 4)): a('v_add_f32_dpp v%d, v%d, v%d row_shl:4 row_mask:0xf bank_mask:0x5' % (X[i], X[i], X[i]))
            for i in range(4):
                if i + 4 < n: a('v_add_f32_dpp v%d, v%d, v%d row_shr:4 row_mask:0xf bank_mask:0xa' % (X[i], X[i + 4], X[i + 4]))
            for i in range(min(n, 4)): a('v_add_f32_dpp v%d, v%d, v%d quad_perm:[2,3,0,1] row_mask:0xf bank_mask:0xf' % (X[i], X[i], X[i]))
            for i in range(2):
                if i + 2 < n: a('v_cndmask_b32 v%d, v%d, v%d, s[72:73]' % (X[i], X[i], X[i + 2]))
            for i in range(min(n, 2)): a('v_add_f32_dpp v%d, v%d, v%d quad_perm:[1,0,3,2] row_mask:0xf bank_mask:0xf' % (X[i], X[i], X[i]))
            if b == nb - 1:
                a('v_mov_b32 v%d, 0xff800000' % (X[0] + 1))
                a('v_cndmask_b32 v%d, v%d, v%d, s[74:75]' % (X[0], X[0], X[1]))
                a('v_cndmask_b32 v%d, v%d, v%d, s[60:61]' % (S[b], X[0] + 1, X[0]))
            else:
                a('v_cndmask_b32 v%d, v%d, v%d, s[74:75]' % (S[b], X[0], X[1]))
            for j in range(n): free.append(kslot[16 * b + j])
        nv = EV
        for b in range(nb):
            kbatch(b)
            last = ('K', min(R, 16 * b + 32) - 1)
            c = 0
            while nv < R and free and (c < P['vgap'] or (b < nb - 1 and last not in vm.q[:vm.done])):
                ld_kv('V', nv); nv += 1; c += 1
        stamp(3)
        rnd2(6, 7, 14)
        if nb == 3: rnd1(0)
        for s_ in S: a('v_mul_f32 v%d, 0x%x, v%d' % (s_, SCALE, s_))
        rnd2(6, 7, 14)
        if nb == 3:
            rnd1(0); a('v_max3_f32 v12, v6, v7, v0')
        else: a('v_max_f32 v12, v6, v7')
        allred([12], [14], 'v_max_f32')
        for s_ in S: a('v_sub_f32 v%d, v%d, v12' % (s_, s_))
        for s_ in S: a('v_mul_f32 v%d, 0x%x, v%d' % (s_, LOG2E, s_))
        for s_ in S: a('v_exp_f32 v%d, v%d' % (s_, s_))
        a('v_add_f32 v13, v6, v7')
        if nb == 3: a('v_add_f32 v13, v13, v0')
        for s_, h_ in zip(S, PH): a('v_cvt_pk_bf16_f32 v%d, 0, v%d' % (h_, s_))
        for s_ in S: a('v_cvt_pk_bf16_f32 v%d, v%d, 0' % (s_, s_))
        allred([13], [14], 'v_add_f32')
        a('v_mov_b32 v14, s44'); a('v_mov_b32 v15, s45')
        a('s_lshl_b32 s12, s6, 10'); a('s_lshl_b32 s13, s7, 7'); a('s_add_u32 s12, s12, s13')
        a('s_lshl_b32 s13, s3, 4'); a('s_add_u32 s12, s12, s13'); a('s_add_u32 s12, s12, 0x%x' % W_ML)
        a('s_lshl_b32 s13, s3, 2'); a('v_mov_b32 v%d, s13' % sreg(free[-1]))
        a('s_mov_b64 exec, 1')
        vm.issue('ML', 'buffer_store_dwordx4 v[12:15], v10, s[48:51], s12 offen sc1')
        a('ds_write_b32 v%d, v12 offset:%d' % (sreg(free[-1]), L_FS))
        a('s_mov_b64 exec, -1')
        def pv(j):
            vm.wait_tag(('V', j))
            Rg = sreg(vslot[j]); b = j >> 4; i = j & 15
            for k in range(4):
                a('v_dot2c_f32_bf16_dpp v%d, v%d, v%d row_newbcast:%d row_mask:0xf bank_mask:0xf' % (16 + 2 * k, S[b], Rg + k, i))
                a('v_dot2c_f32_bf16_dpp v%d, v%d, v%d row_newbcast:%d row_mask:0xf bank_mask:0xf' % (17 + 2 * k, PH[b], Rg + k, i))
            free.append(vslot[j])
        pvn = [0]
        def opportunistic_pv(maxn=99):
            n = 0
            while pvn[0] < R and ('V', pvn[0]) in vm.q[:vm.done] and n < maxn:
                pv(pvn[0]); pvn[0] += 1; n += 1
        def need_slot():
            while not free:
                pv(pvn[0]); pvn[0] += 1
        for j in range(nv, R):
            if P['Nend'] and not ffn and j >= R - P['endk']: NN[0] = P['Nend']
            need_slot()
            ld_kv('V', j)
            opportunistic_pv(2)
        if not ffn:
            sk = L('tg')
            a('s_cmp_lg_u32 s3, 0')
            a.branch('s_cbranch_scc1 ' + sk)
            a('ds_write_b32 v10, v11 offset:%d' % L_TRIG)
            a.label(sk)
        stamp(4)
        def combine():
            stamp(5)
            red8_g([16 + k for k in range(8)])
            a('ds_write_b64 v3, v[16:17] offset:%d' % L_OPART)
            a('s_mov_b64 exec, 1')
            a('ds_add_rtn_u32 v12, v10, v11 offset:%d' % L_OCNT)
            a('s_mov_b32 exec_lo, -1')
            a('v_and_b32 v13, 7, v1'); a('v_lshlrev_b32 v13, 2, v13')
            a('s_waitcnt lgkmcnt(0)')
            a('v_readfirstlane_b32 s12, v12')
            a('s_cmp_lg_u32 s12, 7')
            dn = L('oxd')
            a.branch('s_cbranch_scc1 ' + dn)
            fr = [sreg(s) for s in free]
            assert len(fr) >= 8
            a('ds_read_b32 v12, v13 offset:%d' % L_FS)
            for w in range(8): a('ds_read_b128 v[%d:%d], v4 offset:%d' % (fr[w], fr[w] + 3, L_OPART + 512 * w))
            a('s_waitcnt lgkmcnt(8)')
            a('v_max_f32_dpp v13, v12, v12 quad_perm:[1,0,3,2] row_mask:0xf bank_mask:0xf')
            a('v_max_f32_dpp v13, v13, v13 quad_perm:[2,3,0,1] row_mask:0xf bank_mask:0xf')
            a('v_max_f32_dpp v13, v13, v13 row_half_mirror row_mask:0xf bank_mask:0xf')
            a('v_sub_f32 v12, v12, v13'); a('v_mul_f32 v12, 0x%x, v12' % LOG2E); a('v_exp_f32 v12, v12')
            for w in range(8):
                if w % 2 == 0: a('s_waitcnt lgkmcnt(%d)' % (6 - w))
                for c in range(4):
                    a('%s v%d, v12, v%d row_newbcast:%d row_mask:0xf bank_mask:0xf' % ('v_mul_f32_dpp' if w == 0 else 'v_fmac_f32_dpp', 16 + c, fr[w] + c, w))
            for k in range(4): a('v_min_u32 v%d, -2, v%d' % (16 + k, 16 + k))
            a('buffer_store_dwordx4 v[16:19], v4, s[48:51], s15 offen sc1')
            if not ffn: stamp(6)
            a.label(dn)
            a('s_mov_b64 exec, -1')
        done = [False]
        def progress():
            opportunistic_pv(2)
            if pvn[0] == R and not done[0]:
                done[0] = True; combine()
        if ffn:
            a('s_mul_i32 s9, s4, 9'); a('s_add_u32 s9, s9, s5'); a('s_lshr_b32 s79, s3, 1')
            a('s_bitcmp0_b32 s3, 0'); a('s_cselect_b32 s12, s28, s30'); a('s_cselect_b32 s13, s29, s31')
            a('s_lshl_b32 s14, s9, 7'); a('s_mul_i32 s46, s79, %d' % (144 * 9216)); a('s_add_u32 s14, s14, s46')
            srd_off(60, 12, 13, 14, 576 * 9216)
            a('s_lshl_b32 s14, s9, 3'); a('s_add_u32 s14, s14, s3'); a('s_mul_i32 s14, s14, 9216')
            srd_off(64, 32, 33, 14, 4608 * 1152)
            a('v_lshrrev_b32 v2, 4, v1'); a('v_mul_u32_u24 v2, %d, v2' % (36 * 9216)); a('v_and_b32 v14, 15, v1'); a('v_lshl_add_u32 v2, v14, 3, v2')
            a('v_lshrrev_b32 v14, 5, v1'); a('v_mul_u32_u24 v14, 4608, v14'); a('v_and_b32 v12, 31, v1')
            a('v_lshl_add_u32 v15, v12, 2, v14'); a('v_add_u32 v15, 1024, v15'); a('v_lshl_add_u32 v14, v12, 4, v14')
            G = []
            for n_ in range(18):
                need_slot()
                s = sreg(free.pop(0)); G.append(s)
                for e in range(2):
                    vm.throttle(P['fN'])
                    a('s_mov_b32 s11, %d' % ((2 * n_ + e) * 9216))
                    vm.issue('g', 'buffer_load_dwordx2 v[%d:%d], v2, s[60:63], s11 offen%s' % (s + 2 * e, s + 2 * e + 1, WNT))
                    progress()
            assert done[0]
            DA = []; DB = []
            DC = sreg(free.pop(0))
            for r in range(4):
                for lst, off in ((DA, 0), (DB, 512)):
                    s = sreg(free.pop(0)); lst.append(s)
                    vm.throttle(P['fN'])
                    vm.issue('d', 'buffer_load_dwordx4 v[%d:%d], v14, s[64:67], 0 offen offset:%d%s' % (s, s + 3, r * 1152 + off, WNT))
                vm.issue('d', 'buffer_load_dword v%d, v15, s[64:67], 0 offen offset:%d%s' % (DC + r, r * 1152, WNT))
        else:
            while pvn[0] < R:
                pv(pvn[0]); pvn[0] += 1
            combine()
        fr = [sreg(s) for s in free]
        assert len(fr) >= 9
        if not ffn or P['abl'] or P['so']:
            endwave(7); return
        srd(68, 16, 17, 1152)
        a('v_lshrrev_b32 v3, 4, v1'); a('v_mul_u32_u24 v3, 18, v3'); a('s_mul_i32 s12, s79, 72'); a('v_add_u32 v3, s12, v3')
        a('v_and_b32 v7, 1, v1'); a('v_add3_u32 v7, v7, v3, 16'); a('v_and_b32 v12, 15, v1'); a('v_add_u32 v3, v3, v12')
        a('v_lshrrev_b32 v12, 1, v3'); a('v_lshlrev_b32 v12, 4, v12'); a('v_lshrrev_b32 v13, 1, v7'); a('v_lshlrev_b32 v13, 4, v13')
        a('v_min_u32 v2, 35, v1'); a('s_mul_i32 s12, s3, 36'); a('v_add_u32 v2, s12, v2')
        a('v_lshrrev_b32 v14, 1, v2'); a('v_lshlrev_b32 v14, 4, v14'); a('v_lshlrev_b32 v15, 2, v2')
        a('v_add_u32 v16, 64, v1'); a('v_min_u32 v16, 71, v16'); a('v_lshlrev_b32 v16, 4, v16')
        a('s_mov_b32 s52, 0x%x' % W_MOD); a('s_mov_b32 s53, 0x%x' % (W_MOD + 4096)); a('s_mov_b32 s54, 0x%x' % (W_MOD + 8192)); a('s_mov_b32 s55, 0x%x' % (W_RDYB + 72 * 16))
        ld4 = lambda d, vo, so: 'buffer_load_dwordx4 v[%d:%d], v%d, s[48:51], s%d offen sc1' % (d, d + 3, vo, so)
        poll2([ld4(fr[0], 12, 53), ld4(fr[1], 12, 54), ld4(fr[2], 13, 53), ld4(fr[3], 13, 54), ld4(fr[4], 14, 52), ld4(fr[5], 4, 55), ld4(fr[6], 16, 55),
               'buffer_load_dword v17, v15, s[68:71], 0 offen'], tagcheck(fr[:7]), 'sbcb', sleep=4)
        for k in range(5): a('v_cndmask_b32 v%d, v%d, v%d, s[74:75]' % (fr[k], fr[k], fr[k] + 1))
        SBa, CBa, SBb, CBb = fr[7], fr[7] + 2, fr[8], fr[8] + 2
        for src, dst in ((fr[0], SBa), (fr[1], CBa), (fr[2], SBb), (fr[3], CBb), (fr[4], 20), (17, 22)):
            a('v_lshlrev_b32 v%d, 16, v%d' % (dst, src)); a('v_and_b32 v%d, s78, v%d' % (dst + 1, src))
        a('v_lshlrev_b32 v2, 3, v2'); a('v_lshlrev_b32 v3, 3, v3'); a('v_lshlrev_b32 v9, 3, v7')
        sum_publish(8, L_DPART, W_DS, DSR, 9, 3)
        a('v_mov_b32 v7, v9')
        a('v_lshlrev_b32 v8, 4, v1'); a('v_lshlrev_b32 v9, 2, v1')
        a('v_and_b32 v12, 15, v1'); a('v_lshrrev_b32 v13, 4, v1'); a('v_lshl_add_u32 v12, v12, 2, v13'); a('v_lshlrev_b32 v12, 2, v12')
        a('s_lshl_b32 s12, s3, 8'); a('v_add_u32 v12, s12, v12')
        a('v_lshrrev_b32 v4, 5, v1'); a('v_and_b32 v13, 3, v1'); a('v_lshl_add_u32 v13, v4, 2, v13'); a('v_lshlrev_b32 v13, 2, v13')
        a('s_lshl_b32 s12, s3, 5'); a('v_add_u32 v13, s12, v13')
        a('v_and_b32 v14, 31, v1'); a('v_lshl_add_u32 v4, v14, 1, v4'); a('s_mul_i32 s12, s3, 2304')
        a('v_lshlrev_b32 v14, 4, v4'); a('v_add_u32 v14, s12, v14'); a('v_lshlrev_b32 v15, 2, v4'); a('v_add_u32 v15, s12, v15')
        a('s_and_b32 s12, s5, 3'); a('s_mul_i32 s52, s12, %d' % YSC); a('s_add_u32 s52, s52, 0x%x' % W_YS)
        for k in range(1, 4): a('s_add_u32 s%d, s%d, 4608' % (52 + k, 51 + k))
        spare = 0
        gp = []
        for n_ in range(18):
            lo, hi, spare = pairperm([G[n_], G[n_] + 1], [G[n_] + 2, G[n_] + 3], spare)
            gp.append((lo, hi))
        dp = []
        for rp in range(2):
            A = [DA[2 * rp] + k for k in range(4)] + [DB[2 * rp] + k for k in range(4)] + [DC + 2 * rp]
            B = [DA[2 * rp + 1] + k for k in range(4)] + [DB[2 * rp + 1] + k for k in range(4)] + [DC + 2 * rp + 1]
            lo, hi, spare = pairperm(A, B, spare)
            dp.append((lo, hi))
        for k in range(4): a('v_mov_b32 v%d, 0' % (16 + k))
        stamp(6)
        YR = [fr[k >> 1] + 2 * (k & 1) for k in range(8)]
        def ysc2():
            step = 1
            while step < 8:
                for k in range(0, 8, 2 * step):
                    x = YR[k]; y = YR[k + step]
                    a('v_pk_add_f32 v[%d:%d], v[%d:%d], v[%d:%d]' % (x, x + 1, x, x + 1, y, y + 1))
                step *= 2
            a('v_max_u32 v4, v%d, v%d' % (YR[0], YR[0] + 1))
            a('v_cmp_eq_u32 vcc, -1, v4')
        a('s_mov_b32 exec_hi, 0xf')
        poll2(['buffer_load_dwordx2 v[%d:%d], v2, s[48:51], s%d offen offset:%d sc1' % (YR[k], YR[k] + 1, 52 + (k >> 1), (k & 1) * 2304) for k in range(8)], ysc2, 'ys', sleep=P['yssleep'])
        stamp(7)
        y0 = YR[0]; y1 = y0 + 1
        rnd2(y0, y1, 4)
        a('v_mul_f32 v%d, v%d, v20' % (y0, y0)); a('v_mul_f32 v%d, v%d, v21' % (y1, y1))
        rnd2(y0, y1, 4)
        a('v_add_f32 v%d, v%d, v22' % (y0, y0)); a('v_add_f32 v%d, v%d, v23' % (y1, y1))
        rnd2(y0, y1, 4)
        a('ds_write_b64 v2, v[%d:%d] offset:%d' % (y0, y1, L_X2))
        a('s_mov_b32 exec_hi, -1')
        a('s_waitcnt lgkmcnt(0)')
        a('s_barrier')
        a('ds_read_b128 v[%d:%d], v8 offset:%d' % (fr[0], fr[0] + 3, L_X2))
        a('ds_read_b128 v[%d:%d], v8 offset:%d' % (fr[1], fr[1] + 3, L_X2 + 1024))
        a('ds_read_b32 v20, v9 offset:%d' % (L_X2 + 2048))
        a('ds_read_b64 v[%d:%d], v3 offset:%d' % (fr[2], fr[2] + 1, L_X2))
        a('ds_read_b64 v[%d:%d], v7 offset:%d' % (fr[2] + 2, fr[2] + 3, L_X2))
        a('s_waitcnt lgkmcnt(2)')
        stamp(8)
        ln_stats([fr[0] + k for k in range(4)] + [fr[1] + k for k in range(4)] + [20], fr[3], fr[3] + 1, fr[3] + 2, fr[3] + 3)
        a('s_waitcnt lgkmcnt(0)')
        ln_apply([(fr[2], fr[2] + 1, CBa, CBa + 1, SBa, SBa + 1, 20), (fr[2] + 2, fr[2] + 3, CBb, CBb + 1, SBb, SBb + 1, 21)], fr[3], fr[3] + 1, 0)
        for n_ in range(18):
            lo, hi = gp[n_]
            for k in range(2):
                a('v_dot2c_f32_bf16_dpp v%d, v%d, v%d row_newbcast:%d row_mask:0xf bank_mask:0xf' % (16 + 2 * k, 20 + (n_ >> 4), lo[k], n_ & 15))
                a('v_dot2c_f32_bf16_dpp v%d, v%d, v%d row_newbcast:%d row_mask:0xf bank_mask:0xf' % (17 + 2 * k, 20 + (n_ >> 4), hi[k], n_ & 15))
        a('v_permlane32_swap_b32 v16, v18'); a('v_permlane32_swap_b32 v17, v19')
        a('v_add_f32 v16, v16, v18'); a('v_add_f32 v17, v17, v19')
        a('v_permlane16_swap_b32 v16, v17')
        a('v_add_f32 v16, v16, v17')
        a('ds_write_b32 v12, v16 offset:%d' % L_GU)
        Y = [fr[k >> 2] + (k & 3) for k in range(18)]
        for y in Y: a('v_mov_b32 v%d, 0' % y)
        a('s_waitcnt lgkmcnt(0)')
        a('s_barrier')
        for q in range(4):
            a('ds_read2st64_b32 v[%d:%d], v13 offset0:%d offset1:%d' % (16 + 2 * q, 17 + 2 * q, L_GU // 256 + 2 * q, L_GU // 256 + 2 * q + 1))
        a('s_waitcnt lgkmcnt(0)')
        a('v_pk_add_f32 v[16:17], v[16:17], v[18:19]'); a('v_pk_add_f32 v[20:21], v[20:21], v[22:23]')
        a('v_pk_add_f32 v[16:17], v[16:17], v[20:21]')
        rnd2(16, 17, 18)
        silu([16], [18])
        rnd1(16)
        a('v_mul_f32 v16, v16, v17')
        a('v_mov_b32_dpp v17, v16 quad_perm:[1,1,3,3] row_mask:0xf bank_mask:0xf')
        a('v_cvt_pk_bf16_f32 v16, v16, v17')
        for rp in range(2):
            lo, hi = dp[rp]; q = 2 * rp
            for k in range(9):
                a('v_dot2c_f32_bf16_dpp v%d, v16, v%d quad_perm:[%d,%d,%d,%d] row_mask:0xf bank_mask:0xf' % (Y[2 * k], lo[k], q, q, q, q))
                a('v_dot2c_f32_bf16_dpp v%d, v16, v%d quad_perm:[%d,%d,%d,%d] row_mask:0xf bank_mask:0xf' % (Y[2 * k + 1], hi[k], q, q, q, q))
        half_reduce_write(Y, 14, 15, L_DPART)
        a('s_waitcnt lgkmcnt(0)')
        a('s_barrier')
        a('s_cmp_ge_u32 s3, 3')
        a.branch('s_cbranch_scc1 L_ffn_end')
        sum_publish2(8, L_DPART)
        a.label('L_ffn_end')
        endwave(9)
    attention(36, False)
    a.label('L_attF')
    attention(27, True)

    a.label('L_helper')
    a('s_sub_u32 s11, s3, 8')
    if P['prio']: a('s_setprio %d' % P['prio'])
    a('s_mul_i32 s9, s4, 9'); a('s_add_u32 s9, s9, s5'); a('s_mov_b32 s10, 1'); a('s_mov_b32 s47, s9')
    a('s_cmp_lt_u32 s5, 9')
    a.branch('s_cbranch_scc1 L_role_done')
    a('s_sub_u32 s9, s5, 9'); a('s_mov_b32 s10, 3'); a('s_lshl_b32 s47, s9, 3'); a('s_add_u32 s47, s47, s4'); a('s_add_u32 s47, s47, 72')
    a('s_cmp_lt_u32 s5, 18')
    a.branch('s_cbranch_scc1 L_role_done')
    a('s_cmp_lt_u32 s5, 23'); a('s_cselect_b32 s12, 18, 23'); a('s_cselect_b32 s10, 2, 4')
    a('s_sub_u32 s9, s5, s12'); a('s_lshl_b32 s9, s9, 3'); a('s_add_u32 s9, s9, s4')
    a('s_cmp_lt_u32 s9, 36'); a('s_cselect_b32 s10, s10, 0')
    a.label('L_role_done')
    a('s_waitcnt lgkmcnt(0)')
    if P['b0e']: a('s_barrier')
    def B0():
        if not P['b0e']: a('s_barrier')
    a('s_load_dwordx2 s[44:45], s[42:43], 0')
    srd(48, 42, 43, W_SIZE)
    if P['so']:
        a('ds_write_b32 v10, v11 offset:%d' % L_QFLAG); a('s_waitcnt lgkmcnt(0)'); B0(); a('s_endpgm')
    a('s_cmp_eq_u32 s11, 0')
    a.branch('s_cbranch_scc1 L_ctrl')
    if P['abl'] == 1:
        B0(); endwave(1)
    a('s_cmp_eq_u32 s10, 2')
    a.branch('s_cbranch_scc1 L_mod_leis')
    a('s_cmp_lg_u32 s10, 4')
    a.branch('s_cbranch_scc1 L_h23')
    a('s_lshr_b32 s46, s9, 1'); a('s_and_b32 s79, s9, 1'); a('s_mov_b32 s70, 1'); a('s_mov_b32 s71, 0')
    a.branch('s_branch L_mod_go')
    a.label('L_mod_leis')
    a('s_add_u32 s46, s9, 18'); a('s_mov_b32 s79, 0'); a('s_mov_b32 s70, 2'); a('s_mov_b32 s71, 1')
    B0()
    if P['abl'] in (2, 3): endwave(1)
    a('s_setprio %d' % P['bprio'])
    ldsflag_wait(L_QFLAG, 10, 12, 8)
    a.label('L_mod_go')
    a('s_mul_i32 s13, s79, 288'); a('s_sub_u32 s12, s11, 1'); a('s_mul_i32 s12, s12, 96'); a('s_add_u32 s13, s13, s12')
    a('s_lshl_b32 s12, s46, 7'); a('s_mul_i32 s15, s13, 6912'); a('s_add_u32 s12, s12, s15')
    srd_off(52, 36, 37, 12, 576 * 6912)
    a('s_lshl_b32 s12, s13, 1')
    srd_off(56, 34, 35, 12, 1152)
    a('v_lshrrev_b32 v2, 3, v1'); a('v_and_b32 v3, 7, v1')
    a('v_mul_u32_u24 v4, 24, v2')
    a('v_mul_u32_u24 v2, %d, v2' % (12 * 6912)); a('v_lshl_add_u32 v2, v3, 4, v2')
    for k in range(8): a('v_mov_b32 v%d, 0' % (16 + k))
    a.label('L_mod_loop')
    vm = VM(a)
    vm.issue('c', 'buffer_load_dwordx4 v[24:27], v4, s[56:59], 0 offen')
    vm.issue('c', 'buffer_load_dwordx2 v[28:29], v4, s[56:59], 0 offen offset:16')
    for t in range(12):
        a('s_mov_b32 s15, %d' % (t * 6912))
        vm.issue('w', 'buffer_load_dwordx4 v[%d:%d], v2, s[52:55], s15 offen%s' % (96 + 4 * t, 99 + 4 * t, WNT))
    a('s_cmp_lg_u32 s71, 0')
    a.branch('s_cbranch_scc1 L_mod_nb')
    B0()
    a.label('L_mod_nb')
    vm.wait_tag('c')
    C = list(range(40, 52)); TT = list(range(58, 70))
    for k in range(6):
        a('v_lshlrev_b32 v%d, 16, v%d' % (C[2 * k], 24 + k)); a('v_and_b32 v%d, s78, v%d' % (C[2 * k + 1], 24 + k))
    silu(C, TT)
    for k in range(6): a('v_cvt_pk_bf16_f32 v%d, v%d, v%d' % (24 + k, C[2 * k], C[2 * k + 1]))
    stamp(1)
    spare = 33
    for tp in range(6):
        vm.wait_n(2 + 2 * tp + 2)
        A = [96 + 8 * tp + k for k in range(4)]; B = [100 + 8 * tp + k for k in range(4)]
        lo, hi, spare = pairperm(A, B, spare)
        for k in range(4):
            a('v_dot2c_f32_bf16 v%d, v%d, v%d' % (16 + 2 * k, 24 + tp, lo[k]))
            a('v_dot2c_f32_bf16 v%d, v%d, v%d' % (17 + 2 * k, 24 + tp, hi[k]))
    a('v_add_u32 v2, %d, v2' % (288 * 6912)); a('v_add_u32 v4, 576, v4')
    a('s_sub_u32 s70, s70, 1'); a('s_cmp_lg_u32 s70, 0')
    a.branch('s_cbranch_scc1 L_mod_loop')
    stamp(2)
    red8_g([16 + k for k in range(8)])
    for r in (16, 17): a('v_add_f32_dpp v%d, v%d, v%d row_ror:8 row_mask:0xf bank_mask:0xf' % (r, r, r))
    a('v_lshlrev_b32 v5, 3, v1'); a('s_lshl_b32 s12, s11, 9'); a('v_add_u32 v6, s12, v5')
    a('ds_write_b64 v6, v[16:17] offset:%d' % (L_MPART - 512))
    a('s_mov_b64 exec, 1')
    a('ds_add_rtn_u32 v12, v10, v11 offset:%d' % L_MCNT)
    a('s_mov_b64 exec, -1')
    tag_ready()
    a('v_readfirstlane_b32 s12, v12')
    a('s_cmp_lg_u32 s12, 2')
    a.branch('s_cbranch_scc1 L_mod_done')
    a('ds_read2st64_b64 v[16:19], v5 offset0:%d offset1:%d' % (L_MPART // 512, L_MPART // 512 + 1))
    a('ds_read_b64 v[20:21], v5 offset:%d' % (L_MPART + 1024))
    a('v_lshrrev_b32 v4, 4, v1')
    a('s_waitcnt lgkmcnt(0)')
    a('v_pk_add_f32 v[16:17], v[16:17], v[18:19]'); a('v_pk_add_f32 v[16:17], v[16:17], v[20:21]')
    a('v_mov_b32 v18, s44'); a('v_mov_b32 v19, s45')
    a('s_cmp_lg_u32 s71, 0')
    a.branch('s_cbranch_scc1 L_mod_pub2')
    a('s_cmp_ge_u32 s46, 9'); a('s_cselect_b32 s12, 2, 0'); a('s_cselect_b32 s13, 9, 0'); a('s_add_u32 s12, s12, s79'); a('s_mul_i32 s12, s12, 4608')
    a('s_sub_u32 s13, s46, s13'); a('s_lshl_b32 s13, s13, 9'); a('s_add_u32 s12, s12, s13'); a('s_add_u32 s12, s12, 0x%x' % W_MODP)
    a('v_lshl_add_u32 v4, v3, 2, v4'); a('v_lshlrev_b32 v4, 4, v4')
    a('s_mov_b32 exec_lo, 0x00ff00ff'); a('s_mov_b32 exec_hi, 0x00ff00ff')
    a('buffer_store_dwordx4 v[16:19], v4, s[48:51], s12 offen sc1')
    a('s_mov_b64 exec, -1')
    stamp(3)
    a.branch('s_branch L_mod_done')
    a.label('L_mod_pub2')
    a('s_mul_i32 s12, s9, 57'); a('s_lshr_b32 s12, s12, 9')
    a('s_mul_i32 s13, s12, 9'); a('s_sub_u32 s13, s9, s13')
    rnd2(16, 17, 20)
    a('v_add_f32 v20, 1.0, v16'); a('v_add_f32 v21, 1.0, v17')
    a('s_cmp_eq_u32 s12, 2'); a('s_cselect_b64 s[100:101], -1, 0')
    a('v_cndmask_b32 v16, v16, v20, s[100:101]'); a('v_cndmask_b32 v17, v17, v21, s[100:101]')
    a('v_cvt_pk_bf16_f32 v16, v16, v17')
    a('v_mov_b32 v17, v16')
    a('v_permlane16_swap_b32 v16, v17')
    a('s_lshl_b32 s12, s12, 12'); a('s_lshl_b32 s13, s13, 8'); a('s_add_u32 s12, s12, s13'); a('s_add_u32 s12, s12, 0x%x' % W_MOD)
    a('v_lshrrev_b32 v4, 5, v1'); a('v_lshl_add_u32 v4, v3, 1, v4'); a('v_lshlrev_b32 v4, 4, v4')
    a('s_mov_b32 exec_lo, 0xff'); a('s_mov_b32 exec_hi, 0xff')
    a('buffer_store_dwordx4 v[16:19], v4, s[48:51], s12 offen sc1')
    stamp(3)
    a.label('L_mod_done')
    endwave(4)
    a.label('L_h23')
    B0()
    tag_ready()
    a('s_cmp_eq_u32 s10, 3')
    a.branch('s_cbranch_scc1 L_wo_w')
    endwave(1)

    a.label('L_ctrl')
    vm = VM(a)
    srd(60, 16, 17, 1152)
    a('v_min_u32 v4, 35, v1')
    a('v_lshlrev_b32 v5, 3, v1'); a('v_lshlrev_b32 v6, 1, v1'); a('v_lshlrev_b32 v7, 2, v4'); a('s_mul_i32 s15, s7, 144')
    vm.issue('x', 'buffer_load_dwordx2 v[34:35], v5, s[60:63], 0 offen')
    vm.issue('x', 'buffer_load_dwordx2 v[36:37], v5, s[60:63], 0 offen offset:512')
    vm.issue('x', 'buffer_load_ushort v38, v6, s[60:63], 0 offen offset:1024')
    vm.issue('x', 'buffer_load_dword v39, v7, s[60:63], s15 offen')
    a('s_mul_i32 s12, s7, %d' % (72 * 8192)); a('s_lshl_b32 s13, s6, 8'); a('s_add_u32 s12, s12, s13')
    srd_off(52, 22, 23, 12, 576 * 8192)
    a('v_lshrrev_b32 v2, 4, v1'); a('v_lshlrev_b32 v9, 2, v2'); a('v_lshlrev_b32 v2, 14, v2'); a('v_and_b32 v3, 15, v1'); a('v_lshl_add_u32 v2, v3, 4, v2')
    if P['nowq']: a('s_mov_b32 s54, 0')
    for t in range(18):
        a('s_mov_b32 s15, %d' % ((t >> 1) * 65536 + (t & 1) * 8192))
        vm.issue('w', 'buffer_load_dwordx4 v[%d:%d], v2, s[52:55], s15 offen%s' % (96 + 4 * t, 99 + 4 * t, WNT))
    B0()
    if P['noclr']: a('s_mov_b32 s50, 0')
    for k in range(4): a('v_mov_b32 v%d, -1' % (24 + k))
    a('v_lshlrev_b32 v5, 4, v1')
    a('s_lshl_b32 s12, s8, 9'); a('s_add_u32 s12, s12, 0x%x' % W_OX)
    a('v_lshrrev_b32 v6, 5, v1'); a('v_mul_u32_u24 v6, %d, v6' % (W_OX - W_QP - 512)); a('v_add_u32 v6, v6, v5')
    a('s_sub_u32 s12, s12, %d' % (W_OX - W_QP))
    a('buffer_store_dwordx4 v[24:27], v6, s[48:51], s12 offen sc1')
    a('s_cmp_lg_u32 s10, 1')
    a.branch('s_cbranch_scc1 L_clr2')
    a('s_mov_b32 exec_hi, 0xffff')
    a('v_lshrrev_b32 v6, 2, v1'); a('v_mul_u32_u24 v6, %d, v6' % DSR); a('v_and_b32 v8, 3, v1'); a('v_lshl_add_u32 v6, v8, 4, v6')
    a('s_lshl_b32 s12, s9, 6'); a('s_add_u32 s12, s12, 0x%x' % W_DS)
    for j in range(3):
        a('buffer_store_dwordx4 v[24:27], v6, s[48:51], s12 offen sc1')
        if j < 2: a('s_add_u32 s12, s12, %d' % (12 * DSR))
    a.label('L_clr2')
    a('s_mov_b64 exec, -1')
    a('s_cmp_lg_u32 s10, 3')
    a.branch('s_cbranch_scc1 L_clr3')
    a('v_lshrrev_b32 v6, 4, v1'); a('v_mul_u32_u24 v6, %d, v6' % YSC); a('v_lshl_add_u32 v6, v3, 4, v6')
    a('s_mul_i32 s12, s4, 2304'); a('s_lshl_b32 s13, s9, 8'); a('s_add_u32 s12, s12, s13'); a('s_add_u32 s12, s12, 0x%x' % W_YS)
    a('buffer_store_dwordx4 v[24:27], v6, s[48:51], s12 offen sc1')
    a.label('L_clr3')
    a('s_waitcnt vmcnt(19)')
    XS = list(range(40, 49))
    for k in range(4):
        a('v_lshlrev_b32 v%d, 16, v%d' % (XS[2 * k], 34 + k)); a('v_and_b32 v%d, s78, v%d' % (XS[2 * k + 1], 34 + k))
    a('v_lshlrev_b32 v48, 16, v38')
    ln_stats(XS, 60, 61, 62, 63)
    a('v_lshlrev_b32 v56, 16, v39'); a('v_and_b32 v57, s78, v39')
    a('v_sub_f32 v56, v56, v60'); a('v_sub_f32 v57, v57, v60'); rnd2(56, 57, 58)
    a('v_mul_f32 v56, v56, v61'); a('v_mul_f32 v57, v57, v61'); rnd2(56, 57, 58)
    tag_ready()
    a('s_lshl_b32 s12, s8, 4'); a('s_add_u32 s12, s12, 0x%x' % W_RDYA); a('s_lshl_b32 s13, s47, 4'); a('s_add_u32 s13, s13, 0x%x' % W_RDYB)
    a('v_mov_b32 v8, s13'); a('v_writelane_b32 v8, s12, 0')
    a('v_mov_b32 v66, s44'); a('v_mov_b32 v67, s45')
    a('s_bitcmp1_b32 s10, 0'); a('s_cselect_b32 s12, 3, 1')
    a('v_lshlrev_b32 v5, 4, v4')
    a('s_mul_i32 s64, s7, 576'); a('s_add_u32 s64, s64, 0x%x' % W_MODP)
    for k in range(1, 4): a('s_add_u32 s%d, s%d, 4608' % (64 + k, 63 + k))
    a('v_and_b32 v6, 7, v1'); a('v_lshlrev_b32 v6, 4, v6'); a('s_lshl_b32 s68, s6, 7'); a('s_add_u32 s68, s68, 0x%x' % W_RDYA)
    a('s_waitcnt vmcnt(0)')
    stamp(1)
    a('s_mov_b32 exec_lo, s12'); a('s_mov_b32 exec_hi, 0')
    a('buffer_store_dwordx4 v[64:67], v8, s[48:51], 0 offen sc1')
    a('s_mov_b64 exec, -1')
    if P['noclr']: a('s_mov_b32 s50, 0x%x' % W_SIZE)
    if P['abl'] in (1, 2):
        a('ds_write_b32 v10, v11 offset:%d' % L_QFLAG); endwave(1)
    wq_pairs = []
    def wq_perms():
        spare = 68
        for tp in range(9):
            A = [96 + 8 * tp + k for k in range(4)]; B = [100 + 8 * tp + k for k in range(4)]
            lo, hi, spare = pairperm(A, B, spare)
            wq_pairs.append((lo, hi))
        for k in range(8): a('v_mov_b32 v%d, 0' % (16 + k))
    poll2(['buffer_load_dwordx4 v[%d:%d], v5, s[48:51], s%d offen sc1' % (24 + 8 * k, 27 + 8 * k, 64 + k) for k in range(4)] +
          ['buffer_load_dwordx4 v[28:31], v6, s[48:51], s68 offen sc1'],
          tagcheck([24, 32, 40, 48, 28]), 'h1', filler=wq_perms, sleep=P['h1sleep'])
    stamp(2)
    for base in (24, 40):
        a('v_pk_add_f32 v[%d:%d], v[%d:%d], v[%d:%d]' % (base, base + 1, base, base + 1, base + 8, base + 9))
    rnd2(40, 41, 28)
    rnd2(24, 25, 29)
    a('v_add_f32 v40, 1.0, v40'); a('v_add_f32 v41, 1.0, v41')
    rnd2(40, 41, 28)
    a('v_mul_f32 v56, v56, v40'); a('v_mul_f32 v57, v57, v41'); rnd2(56, 57, 28)
    a('v_add_f32 v56, v56, v24'); a('v_add_f32 v57, v57, v25')
    a('v_cvt_pk_bf16_f32 v56, v56, v57')
    a('ds_write_b32 v7, v56 offset:%d' % L_H1S)
    for jp in range(9): a('ds_read_b32 v%d, v9 offset:%d' % (40 + jp, L_H1S + 16 * jp))
    a('v_lshlrev_b32 v5, 4, v1'); a('v_lshlrev_b32 v6, 5, v3'); a('v_lshl_add_u32 v6, v9, 1, v6')
    a('s_lshl_b32 s15, s8, 9'); a('s_add_u32 s15, s15, 0x%x' % W_QP)
    a('s_waitcnt lgkmcnt(0)')
    for jp in range(9):
        lo, hi = wq_pairs[jp]
        for k in range(4):
            a('v_dot2c_f32_bf16 v%d, v%d, v%d' % (16 + 2 * k, 40 + jp, lo[k]))
            a('v_dot2c_f32_bf16 v%d, v%d, v%d' % (17 + 2 * k, 40 + jp, hi[k]))
    red8_g([16 + k for k in range(8)])
    a('v_min_u32 v16, -2, v16'); a('v_min_u32 v17, -2, v17')
    a('buffer_store_dwordx2 v[16:17], v6, s[48:51], s15 offen sc1')
    stamp(3)
    a('s_lshl_b32 s15, s6, 12'); a('s_add_u32 s15, s15, 0x%x' % W_QP)
    a('v_and_b32 v6, 31, v1'); a('v_lshlrev_b32 v6, 3, v6'); a('v_lshrrev_b32 v7, 5, v1'); a('v_lshl_add_u32 v6, v7, 2, v6')
    if P['qp0']: a('s_sleep %d' % P['qp0'])
    def oxcheck():
        tree_add4([24, 28, 32, 36])
        a('v_permlane32_swap_b32 v24, v26'); a('v_permlane32_swap_b32 v25, v27')
        a('v_add_f32 v24, v24, v26'); a('v_add_f32 v25, v25, v27')
        a('v_max_u32 v26, v24, v25')
        a('v_cvt_pk_bf16_f32 v28, v24, v25')
        a('v_cmp_eq_u32 vcc, -1, v26')
    poll2(['buffer_load_dwordx4 v[%d:%d], v5, s[48:51], s15 offen offset:%d sc1' % (24 + 4 * k, 27 + 4 * k, 1024 * k) for k in range(4)], oxcheck, 'qp', sleep=P['qpsleep'])
    a('ds_write_b32 v6, v28 offset:%d' % L_QS)
    a('ds_write_b32 v10, v11 offset:%d' % L_QFLAG)
    stamp(4)
    def wo_issue():
        vm = VM(a)
        a('s_setprio %d' % P['bprio'])
        a('s_lshl_b32 s46, s4, 2'); a('s_add_u32 s46, s46, s11')
        a('s_mul_i32 s12, s46, 147456'); a('s_lshl_b32 s13, s9, 7'); a('s_add_u32 s12, s12, s13')
        srd_off(52, 24, 25, 12, 4096 * 1152)
        a('v_bfe_u32 v2, v1, 4, 1'); a('v_mul_u32_u24 v2, %d, v2' % (64 * 1152)); a('v_lshrrev_b32 v3, 5, v1'); a('v_mul_u32_u24 v3, 2304, v3')
        a('v_add_u32 v2, v2, v3'); a('v_and_b32 v3, 15, v1'); a('v_lshl_add_u32 v2, v3, 3, v2')
        for n in range(16):
            a('s_mov_b32 s15, %d' % (4608 * n))
            for e in range(2):
                vm.throttle(P['wN'])
                vm.issue('w', 'buffer_load_dwordx2 v[%d:%d], v2, s[52:55], s15 offen offset:%d%s' % (96 + 4 * n + 2 * e, 97 + 4 * n + 2 * e, e * 1152, WNT))
    if P['abl'] == 3: endwave(1)
    a('s_cmp_eq_u32 s10, 3')
    a.branch('s_cbranch_scc1 L_wo')
    a('s_cmp_eq_u32 s10, 2')
    a.branch('s_cbranch_scc1 L_reducer')
    endwave(6)

    a.label('L_wo_w')
    if P['abl'] in (2, 3): endwave(1)
    a('s_setprio %d' % P['bprio'])
    ldsflag_wait(L_QFLAG, 10, 12, 8)
    a.label('L_wo')
    wo_issue()
    a('v_and_b32 v4, 7, v1'); a('v_lshlrev_b32 v4, 4, v4')
    a('s_lshl_b32 s15, s46, 7'); a('s_add_u32 s15, s15, 0x%x' % W_RDYA)
    a('v_lshlrev_b32 v5, 4, v1'); a('s_lshl_b32 s64, s46, 10'); a('s_add_u32 s64, s64, 0x%x' % W_ML)
    poll2(['buffer_load_dwordx4 v[28:31], v4, s[48:51], s15 offen sc1', 'buffer_load_dwordx4 v[24:27], v5, s[48:51], s64 offen sc1'], tagcheck([24, 28]), 'rdyo', sleep=P['mlsleep'])
    a('v_mov_b32 v28, v24')
    allred([28], [29], 'v_max_f32')
    a('v_max_f32_dpp v30, v24, v24 quad_perm:[1,0,3,2] row_mask:0xf bank_mask:0xf')
    a('v_max_f32_dpp v30, v30, v30 quad_perm:[2,3,0,1] row_mask:0xf bank_mask:0xf')
    a('v_max_f32_dpp v30, v30, v30 row_half_mirror row_mask:0xf bank_mask:0xf')
    a('v_sub_f32 v24, v24, v28'); a('v_mul_f32 v24, 0x%x, v24' % LOG2E); a('v_exp_f32 v24, v24')
    a('v_sub_f32 v30, v30, v28'); a('v_mul_f32 v30, 0x%x, v30' % LOG2E); a('v_exp_f32 v30, v30')
    a('v_mul_f32 v25, v25, v24')
    allred([25], [29], 'v_add_f32')
    a('v_rcp_f32 v25, v25')
    a('v_mul_f32 v30, v30, v25')
    for k in range(8): a('v_readlane_b32 s%d, v30, %d' % (56 + k, 8 * k))
    for k in range(4): a('v_mov_b32 v%d, s%d' % (40 + 2 * k, 56 + 2 * k))
    a('s_mov_b32 exec_lo, 0')
    for k in range(4): a('v_mov_b32 v%d, s%d' % (40 + 2 * k, 57 + 2 * k))
    a('s_mov_b32 exec_lo, -1')
    stamp(5)
    spare = 160
    wp = []
    for n in range(16):
        lo, hi, spare = pairperm([96 + 4 * n, 97 + 4 * n], [98 + 4 * n, 99 + 4 * n], spare)
        wp.append((lo, hi))
    for k in range(4): a('v_mov_b32 v%d, 0' % (16 + k))
    a('v_lshlrev_b32 v5, 4, v1')
    a('s_lshl_b32 s15, s46, 12'); a('s_add_u32 s15, s15, 0x%x' % W_OX)
    a('v_lshrrev_b32 v6, 4, v1'); a('v_mul_u32_u24 v8, %d, v6' % YSC); a('v_lshl_add_u32 v6, v3, 2, v6'); a('v_lshlrev_b32 v6, 2, v6')
    a('s_lshl_b32 s12, s11, 8'); a('v_add_u32 v6, s12, v6')
    a('v_lshlrev_b32 v7, 4, v3'); a('v_add_u32 v8, v8, v7')
    a('s_mul_i32 s64, s4, 2304'); a('s_lshl_b32 s13, s9, 8'); a('s_add_u32 s64, s64, s13'); a('s_add_u32 s64, s64, 0x%x' % W_YS)
    stamp(6)
    ldscnt_wait(L_OCNT, 10, 12, 8, 2)
    def oxcheck():
        for hh in (0, 2): a('v_pk_mul_f32 v[%d:%d], v[%d:%d], v[40:41] op_sel_hi:[1,0]' % (24 + hh, 25 + hh, 24 + hh, 25 + hh))
        for k in range(1, 4):
            for hh in (0, 2):
                a('v_pk_fma_f32 v[%d:%d], v[%d:%d], v[%d:%d], v[%d:%d] op_sel_hi:[1,0,1]' % (24 + hh, 25 + hh, 24 + 4 * k + hh, 25 + 4 * k + hh, 40 + 2 * k, 41 + 2 * k, 24 + hh, 25 + hh))
        a('v_permlane32_swap_b32 v24, v26'); a('v_permlane32_swap_b32 v25, v27')
        a('v_add_f32 v24, v24, v26'); a('v_add_f32 v25, v25, v27')
        a('v_max_u32 v26, v24, v25')
        a('v_cvt_pk_bf16_f32 v28, v24, v25')
        a('v_cmp_eq_u32 vcc, -1, v26')
    poll2(['buffer_load_dwordx4 v[%d:%d], v5, s[48:51], s15 offen offset:%d sc1' % (24 + 4 * k, 27 + 4 * k, 1024 * k) for k in range(4)], oxcheck, 'ox', sleep=P['oxsleep'])
    stamp(7)
    for n in range(16):
        lo, hi = wp[n]
        for k in range(2):
            a('v_dot2c_f32_bf16_dpp v%d, v28, v%d row_newbcast:%d row_mask:0xf bank_mask:0xf' % (16 + 2 * k, lo[k], n))
            a('v_dot2c_f32_bf16_dpp v%d, v28, v%d row_newbcast:%d row_mask:0xf bank_mask:0xf' % (17 + 2 * k, hi[k], n))
    a('v_permlane32_swap_b32 v16, v18'); a('v_permlane32_swap_b32 v17, v19')
    a('v_add_f32 v16, v16, v18'); a('v_add_f32 v17, v17, v19')
    a('v_permlane16_swap_b32 v16, v17')
    a('v_add_f32 v16, v16, v17')
    a('ds_write_b32 v6, v16 offset:%d' % L_WPART)
    a('s_waitcnt lgkmcnt(0)')
    stamp(8)
    a('s_barrier')
    a('s_cmp_lg_u32 s11, 0')
    a.branch('s_cbranch_scc1 L_wo_end')
    for w in range(4): a('ds_read_b128 v[%d:%d], v7 offset:%d' % (24 + 4 * w, 27 + 4 * w, L_WPART + 256 * w))
    a('s_waitcnt lgkmcnt(0)')
    tree_add4([24, 28, 32, 36])
    for k in range(4): a('v_min_u32 v%d, -2, v%d' % (24 + k, 24 + k))
    a('buffer_store_dwordx4 v[24:27], v8, s[48:51], s64 offen sc1')
    a.label('L_wo_end')
    endwave(9)

    a.label('L_reducer')
    if P['abl'] == 4: endwave(1)
    a('s_setprio 0')
    a('v_lshlrev_b32 v5, 4, v1'); a('v_add_u32 v6, 128, v1'); a('v_min_u32 v6, 143, v6'); a('v_lshlrev_b32 v6, 4, v6')
    a('s_mov_b32 s15, 0x%x' % W_RDYB)
    a('v_and_b32 v7, 3, v1'); a('v_lshlrev_b32 v8, 4, v7')
    a('s_lshl_b32 s64, s9, 6'); a('s_add_u32 s65, s64, 0x%x' % (W_MOD + 3 * 4096)); a('s_add_u32 s64, s64, 0x%x' % W_MOD)
    ldsflag_wait(L_TRIG, 10, 12, 8)
    poll2(['buffer_load_dwordx4 v[%d:%d], v5, s[48:51], s15 offen offset:%d sc1' % (32 + 4 * k, 35 + 4 * k, 1024 * k) for k in range(2)] +
          ['buffer_load_dwordx4 v[44:47], v6, s[48:51], s15 offen sc1',
           'buffer_load_dwordx4 v[24:27], v8, s[48:51], s64 offen sc1', 'buffer_load_dwordx4 v[28:31], v8, s[48:51], s65 offen sc1'],
          tagcheck([24, 28, 32, 36, 44]), 'rdyr', sleep=8)
    a('v_bfe_u32 v12, v1, 3, 1'); a('v_bfe_u32 v13, v1, 2, 1')
    a('v_lshlrev_b32 v7, 2, v7'); a('v_lshl_add_u32 v7, v12, 1, v7'); a('v_add_u32 v7, v7, v13')
    a('v_lshlrev_b32 v64, 1, v7')
    srd(64, 16, 17, 1152)
    a('s_lshl_b32 s15, s9, 5')
    a('buffer_load_ushort v60, v64, s[64:67], s15 offen')
    a('v_cmp_eq_u32 s[68:69], 1, v12'); a('v_cmp_eq_u32 s[70:71], 1, v13')
    for src, dst in ((24, 61), (28, 62)):
        a('v_cndmask_b32 v14, v%d, v%d, s[68:69]' % (src, src + 1))
        a('v_lshlrev_b32 v15, 16, v14'); a('v_and_b32 v14, s78, v14')
        a('v_cndmask_b32 v%d, v15, v14, s[70:71]' % dst)
    a('s_waitcnt vmcnt(0)')
    a('v_lshlrev_b32 v60, 16, v60')
    srd(64, 38, 39, 1152)
    a('s_lshl_b32 s52, s9, 6'); a('s_add_u32 s52, s52, 0x%x' % W_YS)
    for k in range(1, 4): a('s_add_u32 s%d, s%d, 4608' % (52 + k, 51 + k))
    a('s_mul_i32 s56, s9, %d' % DSR); a('s_add_u32 s56, s56, 0x%x' % W_DS); a('s_add_u32 s57, s56, 4096')
    for k in range(4): a('v_mov_b32 v%d, 0' % (112 + k))
    ldscnt_wait(L_OCNT, 10, 12, 8, 4)
    stamp(6)
    def yscheck():
        tree_add4([24 + 4 * k for k in range(8)])
        a('v_max3_u32 v28, v24, v25, v26'); a('v_max_u32 v28, v28, v27')
        a('v_cmp_eq_u32 vcc, -1, v28')
    poll2(['buffer_load_dwordx4 v[%d:%d], v8, s[48:51], s%d offen offset:%d sc1' % (24 + 4 * k, 27 + 4 * k, 52 + (k >> 1), (k & 1) * 2304) for k in range(8)], yscheck, 'ysr', sleep=1)
    stamp(7)
    a('v_cndmask_b32 v24, v24, v26, s[68:69]'); a('v_cndmask_b32 v25, v25, v27, s[68:69]')
    a('v_cndmask_b32 v16, v24, v25, s[70:71]')
    rnd1(16); a('v_mul_f32 v16, v16, v61'); rnd1(16); a('v_add_f32 v60, v60, v16'); rnd1(60)
    a('s_lshl_b32 s15, s9, 5')
    def dscheck():
        pass
    lp = L('ds'); dn = L('dsd'); nl = 5
    a('s_mov_b32 s14, %d' % POLL_LIMIT)
    a.label(lp)
    for k in range(nl):
        if k == 4: a('s_mov_b32 exec_hi, 0')
        a('buffer_load_dwordx4 v[%d:%d], v5, s[48:51], s%d offen offset:%d sc1' % (96 + 4 * k, 99 + 4 * k, 56 + (k >> 2), (k & 3) * 1024))
    a('s_mov_b32 exec_hi, -1')
    a('s_waitcnt vmcnt(%d)' % (nl - 2))
    for hh in (0, 2): a('v_pk_add_f32 v[%d:%d], v[%d:%d], v[%d:%d]' % (16 + hh, 17 + hh, 96 + hh, 97 + hh, 100 + hh, 101 + hh))
    for k in range(2, nl):
        if k % 2 == 0: a('s_waitcnt vmcnt(%d)' % max(0, nl - k - 2))
        for hh in (0, 2): a('v_pk_add_f32 v[%d:%d], v[%d:%d], v[%d:%d]' % (16 + hh, 17 + hh, 16 + hh, 17 + hh, 96 + 4 * k + hh, 97 + 4 * k + hh))
    for k in range(2): a('v_add_f32_dpp v%d, v%d, v%d row_ror:8 row_mask:0xf bank_mask:0x3' % (16 + k, 16 + k, 16 + k))
    for k in range(2): a('v_add_f32_dpp v%d, v%d, v%d row_ror:8 row_mask:0xf bank_mask:0xc' % (16 + k, 18 + k, 18 + k))
    a('v_add_f32_dpp v16, v16, v16 row_shl:4 row_mask:0xf bank_mask:0x5')
    a('v_add_f32_dpp v16, v17, v17 row_shr:4 row_mask:0xf bank_mask:0xa')
    for sw in ('v_permlane16_swap_b32', 'v_permlane32_swap_b32'):
        a('v_mov_b32 v17, v16'); a('%s v16, v17' % sw); a('v_add_f32 v16, v16, v17')
    a('v_cmp_eq_u32 vcc, -1, v16')
    a('s_cmp_eq_u64 vcc, 0')
    a.branch('s_cbranch_scc1 ' + dn)
    a('s_sub_u32 s14, s14, 1')
    a.branch('s_cbranch_scc0 ' + lp)
    a.label(dn)
    stamp(8)
    rnd1(16); a('v_mul_f32 v16, v16, v62'); rnd1(16); a('v_add_f32 v16, v60, v16')
    a('v_cvt_pk_bf16_f32 v16, v16, v16')
    a('s_mov_b64 exec, 0xffff')
    a('buffer_store_short v16, v64, s[64:67], s15 offen')
    a('s_cmp_lg_u32 s9, 0')
    a.branch('s_cbranch_scc1 L_red_end')
    a('v_mov_b32 v18, s44'); a('v_mov_b32 v19, s45')
    a('s_mov_b64 exec, 1')
    a('buffer_store_dwordx2 v[18:19], v10, s[48:51], 0 offen')
    a.label('L_red_end')
    endwave(9)

    a.label('L_exit')
    a('s_endpgm')

    head = open('adaLN_cond__mha_block_cached__swiglu_ffn__decode.s.ref').read().split('\n')
    hdr = [l for l in head if l.startswith(';') and '@launch' not in l and 'Override launch' not in l and 'grid=ceil' not in l]
    out = '\n'.join(hdr) + '\n'
    out += '; generated by gen3.py params: %s\n' % json.dumps(P, sort_keys=True)
    out += '; @launch grid=(256,1,1) block=(768,1,1) lds=%d\n' % L_SIZE
    out += '.amdgcn_target "amdgcn-amd-amdhsa--gfx950"\n.text\n.globl %s\n.p2align 8\n.type %s,@function\n' % (KNAME, KNAME)
    out += a.text()
    assert a.maxv < 168, a.maxv
    out += '''.section .rodata,"a"
.p2align 6
.amdhsa_kernel %s
  .amdhsa_next_free_vgpr 168
  .amdhsa_next_free_sgpr 102
  .amdhsa_accum_offset 168
  .amdhsa_group_segment_fixed_size 0
  .amdhsa_kernarg_size 112
  .amdhsa_user_sgpr_count 2
  .amdhsa_user_sgpr_kernarg_segment_ptr 1
  .amdhsa_system_sgpr_workgroup_id_x 1
  .amdhsa_float_denorm_mode_32 3
.end_amdhsa_kernel
''' % KNAME
    return out

if __name__ == '__main__':
    kw = {}
    outp = sys.argv[1]
    for x in sys.argv[2:]:
        k, v = x.split('='); kw[k] = int(v)
    open(outp, 'w').write(gen(**kw))
```

```python
import sys, json
from asmlib import Asm, VM

KNAME = 'adaLN_cond__mha_block_cached__swiglu_ffn__decode_kernel'

W_MODP = 0x1000
W_MOD = 0xA000
W_RDYA = 0xE000
W_RDYB = 0xF000
W_QP = 0x10000
W_OM = 0x50000
W_CNT = 0x54000
W_OX = 0x60000
W_YS = 0x80000
YSC = 18432
W_DS = 0x100000
W_DIAG = 0x200000
W_SIZE = 0x400000
L_QFLAG = 0; L_TRIG = 4; L_FSFLAG = 8; L_OCNT = 12; L_MCNT = 16
L_QS = 64; L_FS = 320; L_H1S = 384; L_MPART = 9728
L_OPART = 1024; L_X2 = 5120; L_GU = 7680; L_WPART = 9728; L_DPART = 11264
L_SIZE = 11264 + 8 * 2304
DSR = 4608
def mktab(RF, RW, RL, RU, RN):
    role = lambda a: RF if a < 9 else RW if a < 18 else RL if a < 23 else RU if a < 28 else RN
    return [[role(4 * sp + j) for sp in range(8)] for j in range(4)]
LOG2E = 0x3fb8aa3b
SCALE = 0x3db504f3
INV576 = 0x3ae38e39
EPS = 0x3727c5ac
POLL_LIMIT = 400000

DEF = dict(diag=0, N=4, N0=2, N1=4, interleave=1, kv_nt=1, w_nt=1, trig=64, sleep=0, mlsleep=8, nslots=36, early_v=4, prio=3, wN=8, so=0, bprio=1, Nend=0, endk=12, h1sleep=4, qpsleep=4, qp0=4, fN=8, vgap=1, b0e=1, yssleep=0, oxsleep=0, fprio=0, abl=0, noclr=0, nowq=0, fonly=0, mod256=0, RF=18, RW=30, RL=30, RU=31, RN=32, clead=3, cleadF=3, xmap=1, evF=18)

def gen(**kw):
    P = dict(DEF); P.update(kw)
    a = Asm()
    NTAB = mktab(P['RF'], P['RW'], P['RL'], P['RU'], P['RN'])
    U = 2
    DIAG = P['diag']
    NT = ' nt' if P['kv_nt'] else ''
    WNT = ' nt' if P['w_nt'] else ''
    uid = [0]
    def L(n):
        uid[0] += 1
        return 'L_%s_%d' % (n, uid[0])
    def stamp(k):
        if DIAG: a('s_memrealtime s[%d:%d]' % (80 + 2 * k, 81 + 2 * k))
    def srd(d, lo, hi, size):
        a('s_mov_b32 s%d, s%d' % (d, lo)); a('s_mov_b32 s%d, s%d' % (d + 1, hi))
        a('s_mov_b32 s%d, 0x%x' % (d + 2, size)); a('s_mov_b32 s%d, 0x00020000' % (d + 3))
    def srd_off(d, lo, hi, off_sreg, size_total):
        a('s_add_u32 s%d, s%d, s%d' % (d, lo, off_sreg)); a('s_addc_u32 s%d, s%d, 0' % (d + 1, hi))
        a('s_sub_u32 s%d, 0x%x, s%d' % (d + 2, size_total, off_sreg)); a('s_mov_b32 s%d, 0x00020000' % (d + 3))
    def endwave(nst):
        if DIAG:
            stamp(9)
            a('s_waitcnt lgkmcnt(0)')
            a('s_mov_b64 exec, -1')
            a('v_mov_b32 v2, 0')
            for k in range(10):
                a('v_writelane_b32 v2, s%d, %d' % (80 + 2 * k, k))
            a('s_getreg_b32 s12, hwreg(HW_REG_XCC_ID)')
            a('v_writelane_b32 v2, s12, 10')
            a('s_getreg_b32 s12, hwreg(HW_REG_HW_ID)')
            a('v_writelane_b32 v2, s12, 11')
            a('s_mul_i32 s12, s2, 12'); a('s_add_u32 s12, s12, s3'); a('s_lshl_b32 s12, s12, 6')
            a('s_add_u32 s12, s12, 0x%x' % W_DIAG)
            a('v_lshlrev_b32 v3, 2, v1')
            a('s_mov_b64 exec, 0xffff')
            a('buffer_store_dword v2, v3, s[48:51], s12 offen')
        a('s_endpgm')
    def poll(loads, check, name):
        lp = L(name); dn = L(name + 'd')
        a('s_mov_b32 s14, %d' % POLL_LIMIT)
        a.label(lp)
        for t in loads: a(t)
        a('s_waitcnt vmcnt(0)')
        check()
        a('s_cmp_eq_u64 vcc, 0')
        a.branch('s_cbranch_scc1 ' + dn)
        if P['sleep']: a('s_sleep %d' % P['sleep'])
        a('s_sub_u32 s14, s14, 1')
        a.branch('s_cbranch_scc0 ' + lp)
        a.label(dn)
    def tagcheck(regs):
        def f():
            a('v_cmp_ne_u64 vcc, s[44:45], v[%d:%d]' % (regs[0] + 2, regs[0] + 3))
            for r in regs[1:]:
                a('v_cmp_ne_u64 s[12:13], s[44:45], v[%d:%d]' % (r + 2, r + 3))
                a('s_or_b64 vcc, vcc, s[12:13]')
        return f
    def ldsflag_wait(off, vz, vt, sleep):
        lp = L('fw')
        a.label(lp)
        a('ds_read_b32 v%d, v%d offset:%d' % (vt, vz, off))
        a('s_waitcnt lgkmcnt(0)')
        a('v_readfirstlane_b32 s12, v%d' % vt)
        a('s_cmp_lg_u32 s12, 0')
        dn = L('fwd')
        a.branch('s_cbranch_scc1 ' + dn)
        a('s_sleep %d' % sleep)
        a.branch('s_branch ' + lp)
        a.label(dn)
    def allred(regs, tmps, op):
        for sh in (8, 4, 2, 1):
            for r in regs: a('%s_dpp v%d, v%d, v%d row_ror:%d row_mask:0xf bank_mask:0xf' % (op, r, r, r, sh))
        for sw in ('v_permlane16_swap_b32', 'v_permlane32_swap_b32'):
            for r, t in zip(regs, tmps): a('v_mov_b32 v%d, v%d' % (t, r))
            for r, t in zip(regs, tmps): a('%s v%d, v%d' % (sw, r, t))
            for r, t in zip(regs, tmps): a('%s v%d, v%d, v%d' % (op, r, r, t))
    def red8_g(acc):
        for k in range(4): a('v_permlane32_swap_b32 v%d, v%d' % (acc[k], acc[k + 4]))
        for k in range(4): a('v_add_f32 v%d, v%d, v%d' % (acc[k], acc[k], acc[k + 4]))
        for k in range(2): a('v_permlane16_swap_b32 v%d, v%d' % (acc[k], acc[k + 2]))
        for k in range(2): a('v_add_f32 v%d, v%d, v%d' % (acc[k], acc[k], acc[k + 2]))
    def pairperm(A, B, spare):
        lo = []; hi = []
        for x, y in zip(A, B):
            a('v_perm_b32 v%d, v%d, v%d, s76' % (spare, y, x))
            a('v_perm_b32 v%d, v%d, v%d, s77' % (y, y, x))
            lo.append(spare); hi.append(y); spare = x
        return lo, hi, spare
    def rnd2(x, y, t):
        a('v_cvt_pk_bf16_f32 v%d, v%d, v%d' % (t, x, y))
        a('v_lshlrev_b32 v%d, 16, v%d' % (x, t))
        a('v_and_b32 v%d, s78, v%d' % (y, t))
    def rnd1(x):
        a('v_cvt_pk_bf16_f32 v%d, v%d, v%d' % (x, x, x))
        a('v_and_b32 v%d, s78, v%d' % (x, x))
    def ln_stats(xs, s1, s2, t1, t2):
        a('v_mul_f32 v%d, v%d, v%d' % (s2, xs[0], xs[0]))
        a('v_add_f32 v%d, v%d, v%d' % (s1, xs[0], xs[1]))
        a('v_fmac_f32 v%d, v%d, v%d' % (s2, xs[1], xs[1]))
        for x in xs[2:]:
            a('v_add_f32 v%d, v%d, v%d' % (s1, s1, x))
            a('v_fmac_f32 v%d, v%d, v%d' % (s2, x, x))
        allred([s1, s2], [t1, t2], 'v_add_f32')
        a('v_mul_f32 v%d, 0x%x, v%d' % (s1, INV576, s1))
        a('v_mul_f32 v%d, 0x%x, v%d' % (s2, INV576, s2))
        a('v_fma_f32 v%d, -v%d, v%d, v%d' % (s2, s1, s1, s2))
        a('v_max_f32 v%d, 0, v%d' % (s2, s2))
        rnd2(s1, s2, t1)
        a('v_add_f32 v%d, 0x%x, v%d' % (s2, EPS, s2))
        rnd1(s2)
        a('v_sqrt_f32 v%d, v%d' % (s2, s2))
        rnd1(s2)
        a('v_rcp_f32 v%d, v%d' % (s2, s2))
    def ln_apply(pairs, mean, rs, t):
        for (x0, x1, c0, c1, s0, s1, o) in pairs:
            a('v_sub_f32 v%d, v%d, v%d' % (x0, x0, mean)); a('v_sub_f32 v%d, v%d, v%d' % (x1, x1, mean))
        for (x0, x1, c0, c1, s0, s1, o) in pairs: rnd2(x0, x1, o)
        for (x0, x1, c0, c1, s0, s1, o) in pairs:
            a('v_mul_f32 v%d, v%d, v%d' % (x0, x0, rs)); a('v_mul_f32 v%d, v%d, v%d' % (x1, x1, rs))
        for (x0, x1, c0, c1, s0, s1, o) in pairs: rnd2(x0, x1, o)
        for (x0, x1, c0, c1, s0, s1, o) in pairs:
            a('v_mul_f32 v%d, v%d, v%d' % (x0, x0, c0)); a('v_mul_f32 v%d, v%d, v%d' % (x1, x1, c1))
        for (x0, x1, c0, c1, s0, s1, o) in pairs: rnd2(x0, x1, o)
        for (x0, x1, c0, c1, s0, s1, o) in pairs:
            a('v_add_f32 v%d, v%d, v%d' % (x0, x0, s0)); a('v_add_f32 v%d, v%d, v%d' % (x1, x1, s1))
        for (x0, x1, c0, c1, s0, s1, o) in pairs: a('v_cvt_pk_bf16_f32 v%d, v%d, v%d' % (o, x0, x1))
    def silu(xs, ts):
        for x, t in zip(xs, ts): a('v_mul_f32 v%d, 0x%x, v%d' % (t, LOG2E ^ 0x80000000, x))
        for x, t in zip(xs, ts): a('v_exp_f32 v%d, v%d' % (t, t))
        for x, t in zip(xs, ts): a('v_add_f32 v%d, 1.0, v%d' % (t, t))
        for x, t in zip(xs, ts): a('v_rcp_f32 v%d, v%d' % (t, t))
        for x, t in zip(xs, ts): a('v_mul_f32 v%d, v%d, v%d' % (x, x, t))
    def sum_publish(nparts, lbase, wsbase, rstride, idreg, wv):
        a('s_mul_i32 s12, s%d, 48' % wv)
        a('v_add_u32 v4, s12, v1')
        a('v_lshlrev_b32 v5, 4, v4')
        a('v_lshrrev_b32 v6, 2, v4')
        a('s_mov_b32 s13, %d' % rstride)
        a('v_mul_lo_u32 v6, s13, v6')
        a('v_and_b32 v7, 3, v4')
        a('v_lshl_add_u32 v6, v7, 4, v6')
        a('s_lshl_b32 s12, s%d, 6' % idreg)
        a('s_add_u32 s15, s12, 0x%x' % wsbase)
    def sum_publish2(nparts, lbase):
        a('s_mov_b32 exec_lo, -1'); a('s_mov_b32 exec_hi, 0xffff')
        for k in range(nparts):
            a('ds_read_b128 v[%d:%d], v5 offset:%d' % (24 + 4 * k, 27 + 4 * k, lbase + k * 2304))
        n = nparts; step = 1
        a('s_waitcnt lgkmcnt(0)')
        while step < nparts:
            for k in range(0, nparts, 2 * step):
                for hh in (0, 2):
                    x = 24 + 4 * k + hh; y = 24 + 4 * (k + step) + hh
                    a('v_pk_add_f32 v[%d:%d], v[%d:%d], v[%d:%d]' % (x, x + 1, x, x + 1, y, y + 1))
            step *= 2
        for k in range(4): a('v_min_u32 v%d, -2, v%d' % (24 + k, 24 + k))
        a('buffer_store_dwordx4 v[24:27], v6, s[48:51], s15 offen sc1')

    def poll2(loads, check, name, filler=None, sleep=0):
        lp = L(name); dn = L(name + 'd'); wt = L(name + 'w')
        a('s_mov_b32 s14, %d' % POLL_LIMIT)
        if filler:
            for t in loads: a(t)
            filler()
            a.branch('s_branch ' + wt)
        a.label(lp)
        for t in loads: a(t)
        if filler: a.label(wt)
        a('s_waitcnt vmcnt(0)')
        check()
        a('s_cmp_eq_u64 vcc, 0')
        a.branch('s_cbranch_scc1 ' + dn)
        if sleep: a('s_sleep %d' % sleep)
        a('s_sub_u32 s14, s14, 1')
        a.branch('s_cbranch_scc0 ' + lp)
        a.label(dn)
    def ldscnt_wait(off, vz, vt, minval, sleep):
        lp = L('cw'); dn = L('cwd')
        a.label(lp)
        a('ds_read_b32 v%d, v%d offset:%d' % (vt, vz, off))
        a('s_waitcnt lgkmcnt(0)')
        a('v_readfirstlane_b32 s12, v%d' % vt)
        a('s_cmp_ge_u32 s12, %d' % minval)
        a.branch('s_cbranch_scc1 ' + dn)
        a('s_sleep %d' % sleep)
        a.branch('s_branch ' + lp)
        a.label(dn)
    def tree_add4(bases):
        step = 1; n = len(bases)
        while step < n:
            for k in range(0, n, 2 * step):
                for hh in (0, 2):
                    x = bases[k] + hh; y = bases[k + step] + hh
                    a('v_pk_add_f32 v[%d:%d], v[%d:%d], v[%d:%d]' % (x, x + 1, x, x + 1, y, y + 1))
            step *= 2
    def half_reduce_write(Y, vA, vC, lbase):
        prs = [(Y[k], Y[k + 4]) for k in range(4)] + [(Y[8 + k], Y[12 + k]) for k in range(4)] + [(Y[16], Y[17])]
        for x, y in prs: a('v_permlane32_swap_b32 v%d, v%d' % (x, y))
        for x, y in prs: a('v_add_f32 v%d, v%d, v%d' % (x, x, y))
        a('ds_write_b128 v%d, v[%d:%d] offset:%d' % (vA, Y[0], Y[0] + 3, lbase))
        a('ds_write_b128 v%d, v[%d:%d] offset:%d' % (vA, Y[8], Y[8] + 3, lbase + 1024))
        a('ds_write_b32 v%d, v%d offset:%d' % (vC, Y[16], lbase + 2048))
    def tag_ready():
        a('s_waitcnt lgkmcnt(0)')
        a('s_add_u32 s44, s44, 0x7f4a7c15'); a('s_addc_u32 s45, s45, 0x9e3779b9')

    a.raw(KNAME + ':')
    a('s_cmp_ge_u32 s2, 256')
    a.branch('s_cbranch_scc1 L_exit')
    a('s_load_dwordx16 s[16:31], s[0:1], 0')
    a('s_load_dwordx8 s[32:39], s[0:1], 64')
    a('s_load_dwordx4 s[40:43], s[0:1], 96')
    if DIAG:
        for k in range(80, 100): a('s_mov_b32 s%d, 0' % k)
    stamp(0)
    a('v_lshrrev_b32 v2, 6, v0')
    a('v_and_b32 v1, 63, v0')
    a('v_readfirstlane_b32 s3, v2')
    a('s_and_b32 s4, s2, 7')
    a('s_lshr_b32 s5, s2, 3')
    a('s_lshr_b32 s7, s5, 2')
    if P['xmap']:
        a('s_add_u32 s12, s4, s7'); a('s_and_b32 s12, s12, 7'); a('s_lshl_b32 s12, s12, 2')
    else: a('s_lshl_b32 s12, s4, 2')
    a('s_and_b32 s6, s5, 3'); a('s_add_u32 s6, s6, s12')
    a('s_lshl_b32 s8, s6, 3'); a('s_add_u32 s8, s8, s7')
    a('s_mov_b32 s72, 0xcccccccc'); a('s_mov_b32 s73, 0xcccccccc')
    a('s_mov_b32 s74, 0xaaaaaaaa'); a('s_mov_b32 s75, 0xaaaaaaaa')
    a('s_mov_b32 s76, 0x05040100'); a('s_mov_b32 s77, 0x07060302'); a('s_mov_b32 s78, 0xffff0000')
    a('v_mov_b32 v10, 0'); a('v_mov_b32 v11, 1')
    a('v_lshlrev_b32 v4, 4, v1'); a('v_lshlrev_b32 v2, 2, v1')
    a('s_cmp_lg_u32 s3, 8')
    a.branch('s_cbranch_scc1 L_noinit')
    a('s_mov_b64 exec, 0xff')
    a('ds_write_b32 v2, v10 offset:0')
    a('s_mov_b64 exec, -1')
    a.label('L_noinit')
    a('s_cmp_ge_u32 s3, 8')
    a.branch('s_cbranch_scc1 L_helper')

    starts = [[sum(NTAB[j][:sp]) for sp in range(8)] for j in range(4)]
    SJ = [sum(NTAB[j]) for j in range(4)]
    for j in range(4): assert SJ[j] < 256
    for sp in range(8):
        a('s_mov_b32 s%d, 0x%x' % (56 + sp, sum(starts[j][sp] << (8 * j) for j in range(4))))
        a('s_mov_b32 s%d, 0x%x' % (64 + sp, sum(NTAB[j][sp] << (8 * j) for j in range(4))))
    a('s_mov_b32 m0, s7')
    a('s_and_b32 s14, s5, 3'); a('s_lshl_b32 s14, s14, 3')
    a('s_movrels_b32 s12, s56'); a('s_movrels_b32 s9, s64')
    a('s_lshr_b32 s12, s12, s14'); a('s_and_b32 s12, s12, 0xff'); a('s_lshr_b32 s9, s9, s14'); a('s_and_b32 s9, s9, 0xff')
    a('s_lshl_b32 s12, s12, 13'); a('s_lshl_b32 s13, s6, 21'); a('s_add_u32 s12, s12, s13')
    a('s_lshl_b32 s13, s3, 10')
    a('v_add_u32 v2, s13, v4')
    a('s_lshl_b32 s54, s9, 13'); a('s_mov_b32 s55, 0x00020000')
    a('s_waitcnt lgkmcnt(0)')
    if P['b0e']: a('s_barrier')
    a('s_load_dwordx2 s[44:45], s[42:43], 0')
    a('s_add_u32 s52, s18, s12'); a('s_addc_u32 s53, s19, 0')
    a('s_cmp_lt_u32 s5, 9')
    a.branch('s_cbranch_scc1 L_attF')
    STEP = 8192
    NS = 36
    sreg = lambda s: 24 + 4 * s
    def attention(R, ffn):
        vm = VM(a)
        free = list(range(NS))
        kslot = {}; vslot = {}
        NN = [P['N1']]
        nb = (R + 15) // 16
        for j in range(4):
            for sp in range(8):
                if ((4 * sp + j) < 9) == ffn: assert 16 * (nb - 1) < NTAB[j][sp] <= R
        def ld_kv(kind, j):
            s = free.pop(0)
            (kslot if kind == 'K' else vslot)[j] = s
            vm.throttle(NN[0])
            a('s_mov_b32 s11, 0x%x' % (j * STEP))
            vm.issue((kind, j), 'buffer_load_dwordx4 v[%d:%d], v2, s[%d:%d], s11 offen%s' % (sreg(s), sreg(s) + 3, *((52, 55) if kind == 'K' else (56, 59)), NT))
        for j in range(P['N0']): ld_kv('K', j)
        a('s_add_u32 s56, s20, s12'); a('s_addc_u32 s57, s21, 0'); a('s_mov_b32 s58, s54'); a('s_mov_b32 s59, s55')
        srd(48, 42, 43, W_SIZE)
        a('s_sub_u32 s13, s9, %d' % (16 * (nb - 1))); a('s_bfm_b32 s60, s13, 0'); a('s_mul_i32 s60, s60, 0x10001'); a('s_mov_b32 s61, s60')
        for k in range(8): a('v_mov_b32 v%d, 0' % (16 + k))
        a('v_and_b32 v3, 15, v1'); a('v_lshlrev_b32 v13, 4, v3'); a('v_lshlrev_b32 v3, 5, v3'); a('v_lshrrev_b32 v5, 4, v1')
        a('v_lshl_add_u32 v3, v5, 3, v3'); a('s_lshl_b32 s12, s3, 9'); a('v_add_u32 v3, s12, v3')
        a('s_lshl_b32 s15, s8, 9'); a('s_add_u32 s15, s15, 0x%x' % W_OX)
        if not P['b0e']: a('s_barrier')
        for j in range(P['N0'], R): ld_kv('K', j)
        EV = min(P['evF'] if ffn else P['early_v'], NS - R, R)
        for j in range(EV): ld_kv('V', j)
        stamp(1)
        tag_ready()
        ldsflag_wait(L_QFLAG, 10, 12, 2)
        a('ds_read_b128 v[12:15], v13 offset:%d' % L_QS)
        a('s_waitcnt lgkmcnt(0)')
        stamp(2)
        NN[0] = P['N']
        S = [6, 7, 0][:nb]; PH = [8, 9, 5][:nb]
        def kbatch(b):
            n = min(16, R - 16 * b)
            X = [sreg(kslot[16 * b + j]) for j in range(n)]
            for g in range(0, n, 4):
                js = list(range(g, min(n, g + 4)))
                vm.wait_tag(('K', 16 * b + js[-1]))
                for k in range(4):
                    for j in js:
                        a('v_dot2_f32_bf16 v%d, v%d, v%d, %s' % (X[j], X[j] + k, 12 + k, '0' if k == 0 else 'v%d' % X[j]))
            for i in range(min(n, 8)): a('v_add_f32_dpp v%d, v%d, v%d row_ror:8 row_mask:0xf bank_mask:0x3' % (X[i], X[i], X[i]))
            for i in range(8):
                if i + 8 < n: a('v_add_f32_dpp v%d, v%d, v%d row_ror:8 row_mask:0xf bank_mask:0xc' % (X[i], X[i + 8], X[i + 8]))
            for i in range(min(n, 4)): a('v_add_f32_dpp v%d, v%d, v%d row_shl:4 row_mask:0xf bank_mask:0x5' % (X[i], X[i], X[i]))
            for i in range(4):
                if i + 4 < n: a('v_add_f32_dpp v%d, v%d, v%d row_shr:4 row_mask:0xf bank_mask:0xa' % (X[i], X[i + 4], X[i + 4]))
            for i in range(min(n, 4)): a('v_add_f32_dpp v%d, v%d, v%d quad_perm:[2,3,0,1] row_mask:0xf bank_mask:0xf' % (X[i], X[i], X[i]))
            for i in range(2):
                if i + 2 < n: a('v_cndmask_b32 v%d, v%d, v%d, s[72:73]' % (X[i], X[i], X[i + 2]))
            for i in range(min(n, 2)): a('v_add_f32_dpp v%d, v%d, v%d quad_perm:[1,0,3,2] row_mask:0xf bank_mask:0xf' % (X[i], X[i], X[i]))
            if b == nb - 1:
                a('v_mov_b32 v%d, 0xff800000' % (X[0] + 1))
                a('v_cndmask_b32 v%d, v%d, v%d, s[74:75]' % (X[0], X[0], X[1]))
                a('v_cndmask_b32 v%d, v%d, v%d, s[60:61]' % (S[b], X[0] + 1, X[0]))
            else:
                a('v_cndmask_b32 v%d, v%d, v%d, s[74:75]' % (S[b], X[0], X[1]))
            for j in range(n): free.append(kslot[16 * b + j])
        nv = EV
        for b in range(nb):
            kbatch(b)
            last = ('K', min(R, 16 * b + 32) - 1)
            c = 0
            while nv < R and free and (c < P['vgap'] or (b < nb - 1 and last not in vm.q[:vm.done])):
                ld_kv('V', nv); nv += 1; c += 1
        stamp(3)
        rnd2(6, 7, 14)
        if nb == 3: rnd1(0)
        for s_ in S: a('v_mul_f32 v%d, 0x%x, v%d' % (s_, SCALE, s_))
        rnd2(6, 7, 14)
        if nb == 3:
            rnd1(0); a('v_max3_f32 v12, v6, v7, v0')
        else: a('v_max_f32 v12, v6, v7')
        allred([12], [14], 'v_max_f32')
        for s_ in S: a('v_sub_f32 v%d, v%d, v12' % (s_, s_))
        for s_ in S: a('v_mul_f32 v%d, 0x%x, v%d' % (s_, LOG2E, s_))
        for s_ in S: a('v_exp_f32 v%d, v%d' % (s_, s_))
        a('v_add_f32 v13, v6, v7')
        if nb == 3: a('v_add_f32 v13, v13, v0')
        for s_, h_ in zip(S, PH): a('v_cvt_pk_bf16_f32 v%d, 0, v%d' % (h_, s_))
        for s_ in S: a('v_cvt_pk_bf16_f32 v%d, v%d, 0' % (s_, s_))
        allred([13], [14], 'v_add_f32')
        a('v_mul_f32 v13, 0.25, v13')
        assert nb == 2
        a('s_and_b32 s14, s5, 3'); a('s_lshl_b32 s14, s14, 3'); a('s_lshr_b32 s12, 0x%x, s14' % sum(SJ[j] << (8 * j) for j in range(4))); a('s_and_b32 s12, s12, 0xff')
        a('s_sub_u32 s69, 256, s12'); a('s_lshl_b32 s69, s69, 3')
        a('s_lshl_b32 s12, s12, 13'); a('s_lshl_b32 s13, s6, 21'); a('s_add_u32 s47, s12, s13')
        a('s_lshl_b32 s68, s6, 8'); a('s_add_u32 s68, s68, 0x%x' % W_CNT)
        CLAIM = 'buffer_atomic_add v0, v10, s[48:51], s68 offen sc0 sc1'
        def claim(track):
            a('v_mov_b32 v0, %d' % U)
            a('s_mov_b64 exec, 1')
            if track: vm.issue('claim', CLAIM)
            else: a(CLAIM)
            a('s_mov_b64 exec, -1')
        def unit_loads(B, t, track):
            a('s_lshl_b32 s11, s%d, 10' % t)
            for i in range(2 * U):
                txt = 'buffer_load_dwordx4 v[%d:%d], v4, s[%d:%d], s11 offen offset:%d%s' % (B[i], B[i] + 3, *((52, 55) if i < U else (56, 59)), 1024 * (i % U), NT)
                if track: vm.issue('u', txt)
                else: a(txt)
        def dyn_start():
            DA_ = [sreg(free.pop(0)) for _ in range(2 * U)]
            a('s_add_u32 s52, s18, s47'); a('s_addc_u32 s53, s19, 0'); a('s_lshl_b32 s54, s69, 10')
            a('s_add_u32 s56, s20, s47'); a('s_addc_u32 s57, s21, 0'); a('s_mov_b32 s58, s54')
            vm.wait_tag('claim')
            a('v_readfirstlane_b32 s70, v0')
            a('s_min_u32 s70, s70, s69')
            unit_loads(DA_, 70, True)
            claim(True)
            return DA_
        def unit_proc(B, Q):
            X = B[:U]; V = B[U:]
            for k in range(4):
                for x in X: a('v_dot2_f32_bf16 v%d, v%d, v%d, %s' % (x, x + k, Q + k, '0' if k == 0 else 'v%d' % x))
            for sh in (8, 4, 2, 1):
                for x in X: a('v_add_f32_dpp v%d, v%d, v%d row_ror:%d row_mask:0xf bank_mask:0xf' % (x, x, x, sh))
            x0, x1 = X
            rnd2(x0, x1, 14)
            for x in X: a('v_mul_f32 v%d, 0x%x, v%d' % (x, SCALE, x))
            rnd2(x0, x1, 14)
            a('v_max3_f32 v14, v%d, v%d, v12' % (x0, x1))
            for sw in ('v_permlane16_swap_b32', 'v_permlane32_swap_b32'):
                a('v_mov_b32 v15, v14'); a('%s v14, v15' % sw); a('v_max_f32 v14, v14, v15')
            a('v_sub_f32 v15, v12, v14')
            for x in X: a('v_sub_f32 v%d, v%d, v14' % (x, x))
            a('v_mul_f32 v15, 0x%x, v15' % LOG2E)
            for x in X: a('v_mul_f32 v%d, 0x%x, v%d' % (x, LOG2E, x))
            a('v_mov_b32 v12, v14')
            a('v_exp_f32 v14, v15')
            for x in X: a('v_exp_f32 v%d, v%d' % (x, x))
            for k in range(4): a('v_pk_mul_f32 v[%d:%d], v[%d:%d], v[14:15] op_sel_hi:[1,0]' % (16 + 2 * k, 17 + 2 * k, 16 + 2 * k, 17 + 2 * k))
            a('v_fma_f32 v13, v13, v14, v%d' % x0); a('v_add_f32 v13, v13, v%d' % x1)
            for x in X:
                a('v_cvt_pk_bf16_f32 v%d, 0, v%d' % (x + 1, x)); a('v_cvt_pk_bf16_f32 v%d, v%d, 0' % (x, x))
            for x, v in zip(X, V):
                for k in range(4):
                    a('v_dot2c_f32_bf16 v%d, v%d, v%d' % (16 + 2 * k, x, v + k))
                    a('v_dot2c_f32_bf16 v%d, v%d, v%d' % (17 + 2 * k, x + 1, v + k))
        def dyn_loop(DA_):
            DB_ = [sreg(free.pop(0)) for _ in range(2 * U)]
            Q = sreg(free.pop(0))
            a('v_and_b32 v14, 15, v1'); a('v_lshlrev_b32 v14, 4, v14')
            a('ds_read_b128 v[%d:%d], v14 offset:%d' % (Q, Q + 3, L_QS))
            a('s_waitcnt lgkmcnt(0)')
            lp = L('dyn'); dn = L('dynd')
            a.label(lp)
            for cur, nxt, tc, tn in ((DA_, DB_, 70, 71), (DB_, DA_, 71, 70)):
                sk = L('dyns')
                a('s_cmp_ge_u32 s%d, s69' % tc)
                a.branch('s_cbranch_scc1 ' + dn)
                a('s_waitcnt vmcnt(0)')
                a('v_readfirstlane_b32 s%d, v0' % tn)
                a('s_cmp_ge_u32 s%d, s69' % tn)
                a.branch('s_cbranch_scc1 ' + sk)
                unit_loads(nxt, tn, False)
                claim(False)
                a.label(sk)
                unit_proc(cur, Q)
            a.branch('s_branch ' + lp)
            a.label(dn)
            a('s_waitcnt vmcnt(1)')
            for r in DA_ + DB_ + [Q]: free.append((r - 24) // 4)
        def pv(j):
            vm.wait_tag(('V', j))
            Rg = sreg(vslot[j]); b = j >> 4; i = j & 15
            for k in range(4):
                a('v_dot2c_f32_bf16_dpp v%d, v%d, v%d row_newbcast:%d row_mask:0xf bank_mask:0xf' % (16 + 2 * k, S[b], Rg + k, i))
                a('v_dot2c_f32_bf16_dpp v%d, v%d, v%d row_newbcast:%d row_mask:0xf bank_mask:0xf' % (17 + 2 * k, PH[b], Rg + k, i))
            free.append(vslot[j])
        pvn = [0]
        def opportunistic_pv(maxn=99):
            n = 0
            while pvn[0] < R and ('V', pvn[0]) in vm.q[:vm.done] and n < maxn:
                pv(pvn[0]); pvn[0] += 1; n += 1
        def need_slot():
            while not free:
                pv(pvn[0]); pvn[0] += 1
        for j in range(nv, R):
            if P['Nend'] and not ffn and j >= R - P['endk']: NN[0] = P['Nend']
            need_slot()
            if not ffn and j == R - P['clead']: claim(True)
            ld_kv('V', j)
            opportunistic_pv(2)
        if not ffn:
            sk = L('tg')
            a('s_cmp_lg_u32 s3, 0')
            a.branch('s_cbranch_scc1 ' + sk)
            a('ds_write_b32 v10, v11 offset:%d' % L_TRIG)
            a.label(sk)
        stamp(4)
        def combine():
            stamp(5)
            for sw in ('v_permlane16_swap_b32', 'v_permlane32_swap_b32'):
                a('v_mov_b32 v15, v13'); a('%s v13, v15' % sw); a('v_add_f32 v13, v13, v15')
            red8_g([16 + k for k in range(8)])
            a('s_lshl_b32 s13, s3, 3'); a('v_mov_b32 v14, s13')
            a('ds_write_b64 v3, v[16:17] offset:%d' % L_OPART)
            a('s_mov_b64 exec, 1')
            a('ds_write_b64 v14, v[12:13] offset:%d' % L_FS)
            a('ds_add_rtn_u32 v12, v10, v11 offset:%d' % L_OCNT)
            a('s_mov_b32 exec_lo, -1')
            a('v_and_b32 v14, 7, v1'); a('v_lshlrev_b32 v14, 3, v14')
            a('s_waitcnt lgkmcnt(0)')
            a('v_readfirstlane_b32 s12, v12')
            a('s_cmp_lg_u32 s12, 7')
            dn = L('oxd')
            a.branch('s_cbranch_scc1 ' + dn)
            fr = [sreg(s) for s in free]
            assert len(fr) >= 8
            a('ds_read_b64 v[12:13], v14 offset:%d' % L_FS)
            for w in range(8): a('ds_read_b128 v[%d:%d], v4 offset:%d' % (fr[w], fr[w] + 3, L_OPART + 512 * w))
            a('s_waitcnt lgkmcnt(8)')
            a('v_max_f32_dpp v14, v12, v12 quad_perm:[1,0,3,2] row_mask:0xf bank_mask:0xf')
            a('v_max_f32_dpp v14, v14, v14 quad_perm:[2,3,0,1] row_mask:0xf bank_mask:0xf')
            a('v_max_f32_dpp v14, v14, v14 row_half_mirror row_mask:0xf bank_mask:0xf')
            a('v_sub_f32 v12, v12, v14'); a('v_mul_f32 v12, 0x%x, v12' % LOG2E); a('v_exp_f32 v12, v12')
            a('s_lshl_b32 s13, s8, 4'); a('s_add_u32 s13, s13, 0x%x' % W_OM)
            a('v_mul_f32 v15, v13, v12')
            for w in range(8):
                if w % 2 == 0: a('s_waitcnt lgkmcnt(%d)' % (6 - w))
                for c in range(4):
                    a('%s v%d, v12, v%d row_newbcast:%d row_mask:0xf bank_mask:0xf' % ('v_mul_f32_dpp' if w == 0 else 'v_fmac_f32_dpp', 16 + c, fr[w] + c, w))
            for k in range(4): a('v_min_u32 v%d, -2, v%d' % (16 + k, 16 + k))
            a('buffer_store_dwordx4 v[16:19], v4, s[48:51], s15 offen sc1')
            a('v_add_f32_dpp v15, v15, v15 quad_perm:[1,0,3,2] row_mask:0xf bank_mask:0xf')
            a('v_add_f32_dpp v15, v15, v15 quad_perm:[2,3,0,1] row_mask:0xf bank_mask:0xf')
            a('v_add_f32_dpp v15, v15, v15 row_half_mirror row_mask:0xf bank_mask:0xf')
            a('v_min_u32 v14, -2, v14'); a('v_min_u32 v15, -2, v15')
            a('s_mov_b64 exec, 1')
            a('buffer_store_dwordx2 v[14:15], v10, s[48:51], s13 offen sc1')
            if not ffn: stamp(6)
            a.label(dn)
            a('s_mov_b64 exec, -1')
        done = [False]
        def progress():
            opportunistic_pv(2)
            if pvn[0] == R: done[0] = True
        if ffn:
            a('s_mul_i32 s9, s4, 9'); a('s_add_u32 s9, s9, s5'); a('s_lshr_b32 s79, s3, 1')
            a('s_bitcmp0_b32 s3, 0'); a('s_cselect_b32 s12, s28, s30'); a('s_cselect_b32 s13, s29, s31')
            a('s_lshl_b32 s14, s9, 7'); a('s_mul_i32 s46, s79, %d' % (144 * 9216)); a('s_add_u32 s14, s14, s46')
            srd_off(60, 12, 13, 14, 576 * 9216)
            a('s_lshl_b32 s14, s9, 3'); a('s_add_u32 s14, s14, s3'); a('s_mul_i32 s14, s14, 9216')
            srd_off(64, 32, 33, 14, 4608 * 1152)
            a('v_lshrrev_b32 v2, 4, v1'); a('v_mul_u32_u24 v2, %d, v2' % (36 * 9216)); a('v_and_b32 v14, 15, v1'); a('v_lshl_add_u32 v2, v14, 3, v2')
            a('v_lshrrev_b32 v14, 5, v1'); a('v_mul_u32_u24 v14, 4608, v14'); a('v_and_b32 v5, 31, v1')
            a('v_lshl_add_u32 v15, v5, 2, v14'); a('v_add_u32 v15, 1024, v15'); a('v_lshl_add_u32 v14, v5, 4, v14')
            G = []
            for n_ in range(18):
                need_slot()
                s = sreg(free.pop(0)); G.append(s)
                for e in range(2):
                    vm.throttle(P['fN'])
                    a('s_mov_b32 s11, %d' % ((2 * n_ + e) * 9216))
                    vm.issue('g', 'buffer_load_dwordx2 v[%d:%d], v2, s[60:63], s11 offen%s' % (s + 2 * e, s + 2 * e + 1, WNT))
                    progress()
            assert done[0]
            DA = []; DB = []
            DC = sreg(free.pop(0))
            for r in range(4):
                if r == 4 - (P['cleadF'] + 2) // 3: claim(True)
                for lst, off in ((DA, 0), (DB, 512)):
                    s = sreg(free.pop(0)); lst.append(s)
                    vm.throttle(P['fN'])
                    vm.issue('d', 'buffer_load_dwordx4 v[%d:%d], v14, s[64:67], 0 offen offset:%d%s' % (s, s + 3, r * 1152 + off, WNT))
                vm.issue('d', 'buffer_load_dword v%d, v15, s[64:67], 0 offen offset:%d%s' % (DC + r, r * 1152, WNT))
            DA_ = dyn_start()
            dyn_loop(DA_)
            combine()
        else:
            while len(free) < 2 * U:
                pv(pvn[0]); pvn[0] += 1
            DA_ = dyn_start()
            while pvn[0] < R:
                pv(pvn[0]); pvn[0] += 1
            dyn_loop(DA_)
            combine()
            a('s_waitcnt vmcnt(0)')
        fr = [sreg(s) for s in free]
        assert len(fr) >= 9
        if not ffn or P['abl'] or P['so']:
            endwave(7); return
        srd(68, 16, 17, 1152)
        a('v_lshrrev_b32 v3, 4, v1'); a('v_mul_u32_u24 v3, 18, v3'); a('s_mul_i32 s12, s79, 72'); a('v_add_u32 v3, s12, v3')
        a('v_and_b32 v7, 1, v1'); a('v_add3_u32 v7, v7, v3, 16'); a('v_and_b32 v12, 15, v1'); a('v_add_u32 v3, v3, v12')
        a('v_lshrrev_b32 v12, 1, v3'); a('v_lshlrev_b32 v12, 4, v12'); a('v_lshrrev_b32 v13, 1, v7'); a('v_lshlrev_b32 v13, 4, v13')
        a('v_min_u32 v2, 35, v1'); a('s_mul_i32 s12, s3, 36'); a('v_add_u32 v2, s12, v2')
        a('v_lshrrev_b32 v14, 1, v2'); a('v_lshlrev_b32 v14, 4, v14'); a('v_lshlrev_b32 v15, 2, v2')
        a('v_add_u32 v16, 64, v1'); a('v_min_u32 v16, 71, v16'); a('v_lshlrev_b32 v16, 4, v16')
        a('s_mov_b32 s52, 0x%x' % W_MOD); a('s_mov_b32 s53, 0x%x' % (W_MOD + 4096)); a('s_mov_b32 s54, 0x%x' % (W_MOD + 8192)); a('s_mov_b32 s55, 0x%x' % (W_RDYB + 72 * 16))
        ld4 = lambda d, vo, so: 'buffer_load_dwordx4 v[%d:%d], v%d, s[48:51], s%d offen sc1' % (d, d + 3, vo, so)
        poll2([ld4(fr[0], 12, 53), ld4(fr[1], 12, 54), ld4(fr[2], 13, 53), ld4(fr[3], 13, 54), ld4(fr[4], 14, 52), ld4(fr[5], 4, 55), ld4(fr[6], 16, 55),
               'buffer_load_dword v17, v15, s[68:71], 0 offen'], tagcheck(fr[:7]), 'sbcb', sleep=4)
        for k in range(5): a('v_cndmask_b32 v%d, v%d, v%d, s[74:75]' % (fr[k], fr[k], fr[k] + 1))
        SBa, CBa, SBb, CBb = fr[7], fr[7] + 2, fr[8], fr[8] + 2
        for src, dst in ((fr[0], SBa), (fr[1], CBa), (fr[2], SBb), (fr[3], CBb), (fr[4], 20), (17, 22)):
            a('v_lshlrev_b32 v%d, 16, v%d' % (dst, src)); a('v_and_b32 v%d, s78, v%d' % (dst + 1, src))
        a('v_lshlrev_b32 v2, 3, v2'); a('v_lshlrev_b32 v3, 3, v3'); a('v_lshlrev_b32 v9, 3, v7')
        sum_publish(8, L_DPART, W_DS, DSR, 9, 3)
        a('v_mov_b32 v7, v9')
        a('v_lshlrev_b32 v8, 4, v1'); a('v_lshlrev_b32 v9, 2, v1')
        a('v_and_b32 v12, 15, v1'); a('v_lshrrev_b32 v13, 4, v1'); a('v_lshl_add_u32 v12, v12, 2, v13'); a('v_lshlrev_b32 v12, 2, v12')
        a('s_lshl_b32 s12, s3, 8'); a('v_add_u32 v12, s12, v12')
        a('v_lshrrev_b32 v4, 5, v1'); a('v_and_b32 v13, 3, v1'); a('v_lshl_add_u32 v13, v4, 2, v13'); a('v_lshlrev_b32 v13, 2, v13')
        a('s_lshl_b32 s12, s3, 5'); a('v_add_u32 v13, s12, v13')
        a('v_and_b32 v14, 31, v1'); a('v_lshl_add_u32 v4, v14, 1, v4'); a('s_mul_i32 s12, s3, 2304')
        a('v_lshlrev_b32 v14, 4, v4'); a('v_add_u32 v14, s12, v14'); a('v_lshlrev_b32 v15, 2, v4'); a('v_add_u32 v15, s12, v15')
        a('s_and_b32 s12, s5, 3'); a('s_mul_i32 s52, s12, %d' % YSC); a('s_add_u32 s52, s52, 0x%x' % W_YS)
        for k in range(1, 4): a('s_add_u32 s%d, s%d, 4608' % (52 + k, 51 + k))
        spare = 0
        gp = []
        for n_ in range(18):
            lo, hi, spare = pairperm([G[n_], G[n_] + 1], [G[n_] + 2, G[n_] + 3], spare)
            gp.append((lo, hi))
        dp = []
        for rp in range(2):
            A = [DA[2 * rp] + k for k in range(4)] + [DB[2 * rp] + k for k in range(4)] + [DC + 2 * rp]
            B = [DA[2 * rp + 1] + k for k in range(4)] + [DB[2 * rp + 1] + k for k in range(4)] + [DC + 2 * rp + 1]
            lo, hi, spare = pairperm(A, B, spare)
            dp.append((lo, hi))
        for k in range(4): a('v_mov_b32 v%d, 0' % (16 + k))
        stamp(6)
        YR = [fr[k >> 1] + 2 * (k & 1) for k in range(8)]
        def ysc2():
            step = 1
            while step < 8:
                for k in range(0, 8, 2 * step):
                    x = YR[k]; y = YR[k + step]
                    a('v_pk_add_f32 v[%d:%d], v[%d:%d], v[%d:%d]' % (x, x + 1, x, x + 1, y, y + 1))
                step *= 2
            a('v_max_u32 v4, v%d, v%d' % (YR[0], YR[0] + 1))
            a('v_cmp_eq_u32 vcc, -1, v4')
        a('s_mov_b32 exec_hi, 0xf')
        poll2(['buffer_load_dwordx2 v[%d:%d], v2, s[48:51], s%d offen offset:%d sc1' % (YR[k], YR[k] + 1, 52 + (k >> 1), (k & 1) * 2304) for k in range(8)], ysc2, 'ys', sleep=P['yssleep'])
        stamp(7)
        y0 = YR[0]; y1 = y0 + 1
        rnd2(y0, y1, 4)
        a('v_mul_f32 v%d, v%d, v20' % (y0, y0)); a('v_mul_f32 v%d, v%d, v21' % (y1, y1))
        rnd2(y0, y1, 4)
        a('v_add_f32 v%d, v%d, v22' % (y0, y0)); a('v_add_f32 v%d, v%d, v23' % (y1, y1))
        rnd2(y0, y1, 4)
        a('ds_write_b64 v2, v[%d:%d] offset:%d' % (y0, y1, L_X2))
        a('s_mov_b32 exec_hi, -1')
        a('s_waitcnt lgkmcnt(0)')
        a('s_barrier')
        a('ds_read_b128 v[%d:%d], v8 offset:%d' % (fr[0], fr[0] + 3, L_X2))
        a('ds_read_b128 v[%d:%d], v8 offset:%d' % (fr[1], fr[1] + 3, L_X2 + 1024))
        a('ds_read_b32 v20, v9 offset:%d' % (L_X2 + 2048))
        a('ds_read_b64 v[%d:%d], v3 offset:%d' % (fr[2], fr[2] + 1, L_X2))
        a('ds_read_b64 v[%d:%d], v7 offset:%d' % (fr[2] + 2, fr[2] + 3, L_X2))
        a('s_waitcnt lgkmcnt(2)')
        stamp(8)
        ln_stats([fr[0] + k for k in range(4)] + [fr[1] + k for k in range(4)] + [20], fr[3], fr[3] + 1, fr[3] + 2, fr[3] + 3)
        a('s_waitcnt lgkmcnt(0)')
        ln_apply([(fr[2], fr[2] + 1, CBa, CBa + 1, SBa, SBa + 1, 20), (fr[2] + 2, fr[2] + 3, CBb, CBb + 1, SBb, SBb + 1, 21)], fr[3], fr[3] + 1, 0)
        for n_ in range(18):
            lo, hi = gp[n_]
            for k in range(2):
                a('v_dot2c_f32_bf16_dpp v%d, v%d, v%d row_newbcast:%d row_mask:0xf bank_mask:0xf' % (16 + 2 * k, 20 + (n_ >> 4), lo[k], n_ & 15))
                a('v_dot2c_f32_bf16_dpp v%d, v%d, v%d row_newbcast:%d row_mask:0xf bank_mask:0xf' % (17 + 2 * k, 20 + (n_ >> 4), hi[k], n_ & 15))
        a('v_permlane32_swap_b32 v16, v18'); a('v_permlane32_swap_b32 v17, v19')
        a('v_add_f32 v16, v16, v18'); a('v_add_f32 v17, v17, v19')
        a('v_permlane16_swap_b32 v16, v17')
        a('v_add_f32 v16, v16, v17')
        a('ds_write_b32 v12, v16 offset:%d' % L_GU)
        Y = [fr[k >> 2] + (k & 3) for k in range(18)]
        for y in Y: a('v_mov_b32 v%d, 0' % y)
        a('s_waitcnt lgkmcnt(0)')
        a('s_barrier')
        for q in range(4):
            a('ds_read2st64_b32 v[%d:%d], v13 offset0:%d offset1:%d' % (16 + 2 * q, 17 + 2 * q, L_GU // 256 + 2 * q, L_GU // 256 + 2 * q + 1))
        a('s_waitcnt lgkmcnt(0)')
        a('v_pk_add_f32 v[16:17], v[16:17], v[18:19]'); a('v_pk_add_f32 v[20:21], v[20:21], v[22:23]')
        a('v_pk_add_f32 v[16:17], v[16:17], v[20:21]')
        rnd2(16, 17, 18)
        silu([16], [18])
        rnd1(16)
        a('v_mul_f32 v16, v16, v17')
        a('v_mov_b32_dpp v17, v16 quad_perm:[1,1,3,3] row_mask:0xf bank_mask:0xf')
        a('v_cvt_pk_bf16_f32 v16, v16, v17')
        for rp in range(2):
            lo, hi = dp[rp]; q = 2 * rp
            for k in range(9):
                a('v_dot2c_f32_bf16_dpp v%d, v16, v%d quad_perm:[%d,%d,%d,%d] row_mask:0xf bank_mask:0xf' % (Y[2 * k], lo[k], q, q, q, q))
                a('v_dot2c_f32_bf16_dpp v%d, v16, v%d quad_perm:[%d,%d,%d,%d] row_mask:0xf bank_mask:0xf' % (Y[2 * k + 1], hi[k], q, q, q, q))
        half_reduce_write(Y, 14, 15, L_DPART)
        a('s_waitcnt lgkmcnt(0)')
        a('s_barrier')
        a('s_cmp_ge_u32 s3, 3')
        a.branch('s_cbranch_scc1 L_ffn_end')
        sum_publish2(8, L_DPART)
        a.label('L_ffn_end')
        endwave(9)
    attention(max(P['RW'], P['RL'], P['RU'], P['RN']), False)
    a.label('L_attF')
    attention(P['RF'], True)

    a.label('L_helper')
    a('s_sub_u32 s11, s3, 8')
    if P['prio']: a('s_setprio %d' % P['prio'])
    a('s_mul_i32 s9, s4, 9'); a('s_add_u32 s9, s9, s5'); a('s_mov_b32 s10, 1'); a('s_mov_b32 s47, s9')
    a('s_cmp_lt_u32 s5, 9')
    a.branch('s_cbranch_scc1 L_role_done')
    a('s_sub_u32 s9, s5, 9'); a('s_mov_b32 s10, 3'); a('s_lshl_b32 s47, s9, 3'); a('s_add_u32 s47, s47, s4'); a('s_add_u32 s47, s47, 72')
    a('s_cmp_lt_u32 s5, 18')
    a.branch('s_cbranch_scc1 L_role_done')
    a('s_cmp_lt_u32 s5, 23'); a('s_cselect_b32 s12, 18, 23'); a('s_cselect_b32 s10, 2, 4')
    a('s_sub_u32 s9, s5, s12'); a('s_lshl_b32 s9, s9, 3'); a('s_add_u32 s9, s9, s4')
    a('s_cmp_lt_u32 s9, 36'); a('s_cselect_b32 s10, s10, 0')
    a.label('L_role_done')
    a('s_waitcnt lgkmcnt(0)')
    if P['b0e']: a('s_barrier')
    def B0():
        if not P['b0e']: a('s_barrier')
    a('s_load_dwordx2 s[44:45], s[42:43], 0')
    srd(48, 42, 43, W_SIZE)
    if P['so']:
        a('ds_write_b32 v10, v11 offset:%d' % L_QFLAG); a('s_waitcnt lgkmcnt(0)'); B0(); a('s_endpgm')
    a('s_cmp_eq_u32 s11, 0')
    a.branch('s_cbranch_scc1 L_ctrl')
    if P['abl'] == 1:
        B0(); endwave(1)
    a('s_cmp_eq_u32 s10, 2')
    a.branch('s_cbranch_scc1 L_mod_leis')
    a('s_cmp_lg_u32 s10, 4')
    a.branch('s_cbranch_scc1 L_h23')
    a('s_lshr_b32 s46, s9, 1'); a('s_and_b32 s79, s9, 1'); a('s_mov_b32 s70, 1'); a('s_mov_b32 s71, 0')
    a.branch('s_branch L_mod_go')
    a.label('L_mod_leis')
    a('s_add_u32 s46, s9, 18'); a('s_mov_b32 s79, 0'); a('s_mov_b32 s70, 2'); a('s_mov_b32 s71, 1')
    B0()
    if P['abl'] in (2, 3): endwave(1)
    a('s_setprio %d' % P['bprio'])
    ldsflag_wait(L_QFLAG, 10, 12, 8)
    a.label('L_mod_go')
    a('s_mul_i32 s13, s79, 288'); a('s_sub_u32 s12, s11, 1'); a('s_mul_i32 s12, s12, 96'); a('s_add_u32 s13, s13, s12')
    a('s_lshl_b32 s12, s46, 7'); a('s_mul_i32 s15, s13, 6912'); a('s_add_u32 s12, s12, s15')
    srd_off(52, 36, 37, 12, 576 * 6912)
    a('s_lshl_b32 s12, s13, 1')
    srd_off(56, 34, 35, 12, 1152)
    a('v_lshrrev_b32 v2, 3, v1'); a('v_and_b32 v3, 7, v1')
    a('v_mul_u32_u24 v4, 24, v2')
    a('v_mul_u32_u24 v2, %d, v2' % (12 * 6912)); a('v_lshl_add_u32 v2, v3, 4, v2')
    if P['mod256']:
        a('s_lshr_b32 s12, s9, 2'); a('s_lshl_b32 s12, s12, 8'); a('s_and_b32 s13, s9, 3'); a('s_mul_i32 s13, s13, 144'); a('s_sub_u32 s15, s11, 1'); a('s_mul_i32 s15, s15, 48')
        a('s_add_u32 s13, s13, s15'); a('s_mul_i32 s13, s13, 6912'); a('s_add_u32 s12, s12, s13')
        srd_off(52, 36, 37, 12, 576 * 6912)
        a('v_lshrrev_b32 v2, 4, v1'); a('v_mul_u32_u24 v2, %d, v2' % (12 * 6912)); a('v_and_b32 v5, 15, v1'); a('v_lshl_add_u32 v2, v5, 4, v2')
    for k in range(8): a('v_mov_b32 v%d, 0' % (16 + k))
    a.label('L_mod_loop')
    vm = VM(a)
    vm.issue('c', 'buffer_load_dwordx4 v[24:27], v4, s[56:59], 0 offen')
    vm.issue('c', 'buffer_load_dwordx2 v[28:29], v4, s[56:59], 0 offen offset:16')
    for t in range(12):
        a('s_mov_b32 s15, %d' % (t * 6912))
        vm.issue('w', 'buffer_load_dwordx4 v[%d:%d], v2, s[52:55], s15 offen%s' % (96 + 4 * t, 99 + 4 * t, WNT))
    a('s_cmp_lg_u32 s71, 0')
    a.branch('s_cbranch_scc1 L_mod_nb')
    B0()
    a.label('L_mod_nb')
    vm.wait_tag('c')
    C = list(range(40, 52)); TT = list(range(58, 70))
    for k in range(6):
        a('v_lshlrev_b32 v%d, 16, v%d' % (C[2 * k], 24 + k)); a('v_and_b32 v%d, s78, v%d' % (C[2 * k + 1], 24 + k))
    silu(C, TT)
    for k in range(6): a('v_cvt_pk_bf16_f32 v%d, v%d, v%d' % (24 + k, C[2 * k], C[2 * k + 1]))
    stamp(1)
    spare = 33
    for tp in range(6):
        vm.wait_n(2 + 2 * tp + 2)
        A = [96 + 8 * tp + k for k in range(4)]; B = [100 + 8 * tp + k for k in range(4)]
        lo, hi, spare = pairperm(A, B, spare)
        for k in range(4):
            a('v_dot2c_f32_bf16 v%d, v%d, v%d' % (16 + 2 * k, 24 + tp, lo[k]))
            a('v_dot2c_f32_bf16 v%d, v%d, v%d' % (17 + 2 * k, 24 + tp, hi[k]))
    a('v_add_u32 v2, %d, v2' % (288 * 6912)); a('v_add_u32 v4, 576, v4')
    a('s_sub_u32 s70, s70, 1'); a('s_cmp_lg_u32 s70, 0')
    a.branch('s_cbranch_scc1 L_mod_loop')
    stamp(2)
    red8_g([16 + k for k in range(8)])
    for r in (16, 17): a('v_add_f32_dpp v%d, v%d, v%d row_ror:8 row_mask:0xf bank_mask:0xf' % (r, r, r))
    a('v_lshlrev_b32 v5, 3, v1'); a('s_lshl_b32 s12, s11, 9'); a('v_add_u32 v6, s12, v5')
    a('ds_write_b64 v6, v[16:17] offset:%d' % (L_MPART - 512))
    a('s_mov_b64 exec, 1')
    a('ds_add_rtn_u32 v12, v10, v11 offset:%d' % L_MCNT)
    a('s_mov_b64 exec, -1')
    tag_ready()
    a('v_readfirstlane_b32 s12, v12')
    a('s_cmp_lg_u32 s12, 2')
    a.branch('s_cbranch_scc1 L_mod_done')
    a('ds_read2st64_b64 v[16:19], v5 offset0:%d offset1:%d' % (L_MPART // 512, L_MPART // 512 + 1))
    a('ds_read_b64 v[20:21], v5 offset:%d' % (L_MPART + 1024))
    a('v_lshrrev_b32 v4, 4, v1')
    a('s_waitcnt lgkmcnt(0)')
    a('v_pk_add_f32 v[16:17], v[16:17], v[18:19]'); a('v_pk_add_f32 v[16:17], v[16:17], v[20:21]')
    a('v_mov_b32 v18, s44'); a('v_mov_b32 v19, s45')
    a('s_cmp_lg_u32 s71, 0')
    a.branch('s_cbranch_scc1 L_mod_pub2')
    a('s_cmp_ge_u32 s46, 9'); a('s_cselect_b32 s12, 2, 0'); a('s_cselect_b32 s13, 9, 0'); a('s_add_u32 s12, s12, s79'); a('s_mul_i32 s12, s12, 4608')
    a('s_sub_u32 s13, s46, s13'); a('s_lshl_b32 s13, s13, 9'); a('s_add_u32 s12, s12, s13'); a('s_add_u32 s12, s12, 0x%x' % W_MODP)
    a('v_lshl_add_u32 v4, v3, 2, v4'); a('v_lshlrev_b32 v4, 4, v4')
    a('s_mov_b32 exec_lo, 0x00ff00ff'); a('s_mov_b32 exec_hi, 0x00ff00ff')
    a('buffer_store_dwordx4 v[16:19], v4, s[48:51], s12 offen sc1')
    a('s_mov_b64 exec, -1')
    stamp(3)
    a.branch('s_branch L_mod_done')
    a.label('L_mod_pub2')
    a('s_mul_i32 s12, s9, 57'); a('s_lshr_b32 s12, s12, 9')
    a('s_mul_i32 s13, s12, 9'); a('s_sub_u32 s13, s9, s13')
    rnd2(16, 17, 20)
    a('v_add_f32 v20, 1.0, v16'); a('v_add_f32 v21, 1.0, v17')
    a('s_cmp_eq_u32 s12, 2'); a('s_cselect_b64 s[100:101], -1, 0')
    a('v_cndmask_b32 v16, v16, v20, s[100:101]'); a('v_cndmask_b32 v17, v17, v21, s[100:101]')
    a('v_cvt_pk_bf16_f32 v16, v16, v17')
    a('v_mov_b32 v17, v16')
    a('v_permlane16_swap_b32 v16, v17')
    a('s_lshl_b32 s12, s12, 12'); a('s_lshl_b32 s13, s13, 8'); a('s_add_u32 s12, s12, s13'); a('s_add_u32 s12, s12, 0x%x' % W_MOD)
    a('v_lshrrev_b32 v4, 5, v1'); a('v_lshl_add_u32 v4, v3, 1, v4'); a('v_lshlrev_b32 v4, 4, v4')
    a('s_mov_b32 exec_lo, 0xff'); a('s_mov_b32 exec_hi, 0xff')
    a('buffer_store_dwordx4 v[16:19], v4, s[48:51], s12 offen sc1')
    stamp(3)
    a.label('L_mod_done')
    endwave(4)
    a.label('L_h23')
    B0()
    tag_ready()
    a('s_cmp_eq_u32 s10, 3')
    a.branch('s_cbranch_scc1 L_wo_w')
    endwave(1)

    a.label('L_ctrl')
    vm = VM(a)
    srd(60, 16, 17, 1152)
    a('v_min_u32 v4, 35, v1')
    a('v_lshlrev_b32 v5, 3, v1'); a('v_lshlrev_b32 v6, 1, v1'); a('v_lshlrev_b32 v7, 2, v4'); a('s_mul_i32 s15, s7, 144')
    vm.issue('x', 'buffer_load_dwordx2 v[34:35], v5, s[60:63], 0 offen')
    vm.issue('x', 'buffer_load_dwordx2 v[36:37], v5, s[60:63], 0 offen offset:512')
    vm.issue('x', 'buffer_load_ushort v38, v6, s[60:63], 0 offen offset:1024')
    vm.issue('x', 'buffer_load_dword v39, v7, s[60:63], s15 offen')
    a('s_mul_i32 s12, s7, %d' % (72 * 8192)); a('s_lshl_b32 s13, s6, 8'); a('s_add_u32 s12, s12, s13')
    srd_off(52, 22, 23, 12, 576 * 8192)
    a('v_lshrrev_b32 v2, 4, v1'); a('v_lshlrev_b32 v9, 2, v2'); a('v_lshlrev_b32 v2, 14, v2'); a('v_and_b32 v3, 15, v1'); a('v_lshl_add_u32 v2, v3, 4, v2')
    if P['nowq']: a('s_mov_b32 s54, 0')
    for t in range(18):
        a('s_mov_b32 s15, %d' % ((t >> 1) * 65536 + (t & 1) * 8192))
        vm.issue('w', 'buffer_load_dwordx4 v[%d:%d], v2, s[52:55], s15 offen%s' % (96 + 4 * t, 99 + 4 * t, WNT))
    B0()
    if P['noclr']: a('s_mov_b32 s50, 0')
    for k in range(4): a('v_mov_b32 v%d, -1' % (24 + k))
    a('v_lshlrev_b32 v5, 4, v1')
    a('s_lshl_b32 s12, s8, 9'); a('s_add_u32 s12, s12, 0x%x' % W_OX)
    a('v_lshrrev_b32 v6, 5, v1'); a('v_mul_u32_u24 v6, %d, v6' % (W_OX - W_QP - 512)); a('v_add_u32 v6, v6, v5')
    a('s_sub_u32 s12, s12, %d' % (W_OX - W_QP))
    a('buffer_store_dwordx4 v[24:27], v6, s[48:51], s12 offen sc1')
    a('s_lshl_b32 s12, s8, 4'); a('s_add_u32 s12, s12, 0x%x' % W_OM)
    a('s_mov_b64 exec, 1')
    a('buffer_store_dwordx4 v[24:27], v10, s[48:51], s12 offen sc1')
    a('s_cmp_lg_u32 s7, 0')
    a.branch('s_cbranch_scc1 L_clr1')
    a('s_lshl_b32 s12, s6, 8'); a('s_add_u32 s12, s12, 0x%x' % W_CNT)
    a('buffer_store_dword v10, v10, s[48:51], s12 offen sc1')
    a.label('L_clr1')
    a('s_mov_b64 exec, -1')
    a('s_cmp_lg_u32 s10, 1')
    a.branch('s_cbranch_scc1 L_clr2')
    a('s_mov_b32 exec_hi, 0xffff')
    a('v_lshrrev_b32 v6, 2, v1'); a('v_mul_u32_u24 v6, %d, v6' % DSR); a('v_and_b32 v8, 3, v1'); a('v_lshl_add_u32 v6, v8, 4, v6')
    a('s_lshl_b32 s12, s9, 6'); a('s_add_u32 s12, s12, 0x%x' % W_DS)
    for j in range(3):
        a('buffer_store_dwordx4 v[24:27], v6, s[48:51], s12 offen sc1')
        if j < 2: a('s_add_u32 s12, s12, %d' % (12 * DSR))
    a.label('L_clr2')
    a('s_mov_b64 exec, -1')
    a('s_cmp_lg_u32 s10, 3')
    a.branch('s_cbranch_scc1 L_clr3')
    a('v_lshrrev_b32 v6, 4, v1'); a('v_mul_u32_u24 v6, %d, v6' % YSC); a('v_lshl_add_u32 v6, v3, 4, v6')
    a('s_mul_i32 s12, s4, 2304'); a('s_lshl_b32 s13, s9, 8'); a('s_add_u32 s12, s12, s13'); a('s_add_u32 s12, s12, 0x%x' % W_YS)
    a('buffer_store_dwordx4 v[24:27], v6, s[48:51], s12 offen sc1')
    a.label('L_clr3')
    a('s_waitcnt vmcnt(20)')
    XS = list(range(40, 49))
    for k in range(4):
        a('v_lshlrev_b32 v%d, 16, v%d' % (XS[2 * k], 34 + k)); a('v_and_b32 v%d, s78, v%d' % (XS[2 * k + 1], 34 + k))
    a('v_lshlrev_b32 v48, 16, v38')
    ln_stats(XS, 60, 61, 62, 63)
    a('v_lshlrev_b32 v56, 16, v39'); a('v_and_b32 v57, s78, v39')
    a('v_sub_f32 v56, v56, v60'); a('v_sub_f32 v57, v57, v60'); rnd2(56, 57, 58)
    a('v_mul_f32 v56, v56, v61'); a('v_mul_f32 v57, v57, v61'); rnd2(56, 57, 58)
    tag_ready()
    a('s_lshl_b32 s12, s8, 4'); a('s_add_u32 s12, s12, 0x%x' % W_RDYA); a('s_lshl_b32 s13, s47, 4'); a('s_add_u32 s13, s13, 0x%x' % W_RDYB)
    a('v_mov_b32 v8, s13'); a('v_writelane_b32 v8, s12, 0')
    a('v_mov_b32 v66, s44'); a('v_mov_b32 v67, s45')
    a('s_bitcmp1_b32 s10, 0'); a('s_cselect_b32 s12, 3, 1')
    a('v_lshlrev_b32 v5, 4, v4')
    a('s_mul_i32 s64, s7, 576'); a('s_add_u32 s64, s64, 0x%x' % W_MODP)
    for k in range(1, 4): a('s_add_u32 s%d, s%d, 4608' % (64 + k, 63 + k))
    a('v_and_b32 v6, 7, v1'); a('v_lshlrev_b32 v6, 4, v6'); a('s_lshl_b32 s68, s6, 7'); a('s_add_u32 s68, s68, 0x%x' % W_RDYA)
    a('s_waitcnt vmcnt(0)')
    stamp(1)
    a('s_mov_b32 exec_lo, s12'); a('s_mov_b32 exec_hi, 0')
    a('buffer_store_dwordx4 v[64:67], v8, s[48:51], 0 offen sc1')
    a('s_mov_b64 exec, -1')
    if P['noclr']: a('s_mov_b32 s50, 0x%x' % W_SIZE)
    if P['abl'] in (1, 2):
        a('ds_write_b32 v10, v11 offset:%d' % L_QFLAG); endwave(1)
    wq_pairs = []
    def wq_perms():
        spare = 68
        for tp in range(9):
            A = [96 + 8 * tp + k for k in range(4)]; B = [100 + 8 * tp + k for k in range(4)]
            lo, hi, spare = pairperm(A, B, spare)
            wq_pairs.append((lo, hi))
        for k in range(8): a('v_mov_b32 v%d, 0' % (16 + k))
    poll2(['buffer_load_dwordx4 v[%d:%d], v5, s[48:51], s%d offen sc1' % (24 + 8 * k, 27 + 8 * k, 64 + k) for k in range(4)] +
          ['buffer_load_dwordx4 v[28:31], v6, s[48:51], s68 offen sc1'],
          tagcheck([24, 32, 40, 48, 28]), 'h1', filler=wq_perms, sleep=P['h1sleep'])
    stamp(2)
    for base in (24, 40):
        a('v_pk_add_f32 v[%d:%d], v[%d:%d], v[%d:%d]' % (base, base + 1, base, base + 1, base + 8, base + 9))
    rnd2(40, 41, 28)
    rnd2(24, 25, 29)
    a('v_add_f32 v40, 1.0, v40'); a('v_add_f32 v41, 1.0, v41')
    rnd2(40, 41, 28)
    a('v_mul_f32 v56, v56, v40'); a('v_mul_f32 v57, v57, v41'); rnd2(56, 57, 28)
    a('v_add_f32 v56, v56, v24'); a('v_add_f32 v57, v57, v25')
    a('v_cvt_pk_bf16_f32 v56, v56, v57')
    a('ds_write_b32 v7, v56 offset:%d' % L_H1S)
    for jp in range(9): a('ds_read_b32 v%d, v9 offset:%d' % (40 + jp, L_H1S + 16 * jp))
    a('v_lshlrev_b32 v5, 4, v1'); a('v_lshlrev_b32 v6, 5, v3'); a('v_lshl_add_u32 v6, v9, 1, v6')
    a('s_lshl_b32 s15, s8, 9'); a('s_add_u32 s15, s15, 0x%x' % W_QP)
    a('s_waitcnt lgkmcnt(0)')
    for jp in range(9):
        lo, hi = wq_pairs[jp]
        for k in range(4):
            a('v_dot2c_f32_bf16 v%d, v%d, v%d' % (16 + 2 * k, 40 + jp, lo[k]))
            a('v_dot2c_f32_bf16 v%d, v%d, v%d' % (17 + 2 * k, 40 + jp, hi[k]))
    red8_g([16 + k for k in range(8)])
    a('v_min_u32 v16, -2, v16'); a('v_min_u32 v17, -2, v17')
    a('buffer_store_dwordx2 v[16:17], v6, s[48:51], s15 offen sc1')
    stamp(3)
    a('s_lshl_b32 s15, s6, 12'); a('s_add_u32 s15, s15, 0x%x' % W_QP)
    a('v_and_b32 v6, 31, v1'); a('v_lshlrev_b32 v6, 3, v6'); a('v_lshrrev_b32 v7, 5, v1'); a('v_lshl_add_u32 v6, v7, 2, v6')
    if P['qp0']: a('s_sleep %d' % P['qp0'])
    def oxcheck():
        tree_add4([24, 28, 32, 36])
        a('v_permlane32_swap_b32 v24, v26'); a('v_permlane32_swap_b32 v25, v27')
        a('v_add_f32 v24, v24, v26'); a('v_add_f32 v25, v25, v27')
        a('v_max_u32 v26, v24, v25')
        a('v_cvt_pk_bf16_f32 v28, v24, v25')
        a('v_cmp_eq_u32 vcc, -1, v26')
    poll2(['buffer_load_dwordx4 v[%d:%d], v5, s[48:51], s15 offen offset:%d sc1' % (24 + 4 * k, 27 + 4 * k, 1024 * k) for k in range(4)], oxcheck, 'qp', sleep=P['qpsleep'])
    a('ds_write_b32 v6, v28 offset:%d' % L_QS)
    a('ds_write_b32 v10, v11 offset:%d' % L_QFLAG)
    stamp(4)
    def wo_issue():
        vm = VM(a)
        a('s_setprio %d' % P['bprio'])
        a('s_lshl_b32 s46, s4, 2'); a('s_add_u32 s46, s46, s11')
        a('s_mul_i32 s12, s46, 147456'); a('s_lshl_b32 s13, s9, 7'); a('s_add_u32 s12, s12, s13')
        srd_off(52, 24, 25, 12, 4096 * 1152)
        a('v_bfe_u32 v2, v1, 4, 1'); a('v_mul_u32_u24 v2, %d, v2' % (64 * 1152)); a('v_lshrrev_b32 v3, 5, v1'); a('v_mul_u32_u24 v3, 2304, v3')
        a('v_add_u32 v2, v2, v3'); a('v_and_b32 v3, 15, v1'); a('v_lshl_add_u32 v2, v3, 3, v2')
        for n in range(16):
            a('s_mov_b32 s15, %d' % (4608 * n))
            for e in range(2):
                vm.throttle(P['wN'])
                vm.issue('w', 'buffer_load_dwordx2 v[%d:%d], v2, s[52:55], s15 offen offset:%d%s' % (96 + 4 * n + 2 * e, 97 + 4 * n + 2 * e, e * 1152, WNT))
    if P['abl'] == 3: endwave(1)
    a('s_cmp_eq_u32 s10, 3')
    a.branch('s_cbranch_scc1 L_wo')
    a('s_cmp_eq_u32 s10, 2')
    a.branch('s_cbranch_scc1 L_reducer')
    endwave(6)

    a.label('L_wo_w')
    if P['abl'] in (2, 3): endwave(1)
    a('s_setprio %d' % P['bprio'])
    ldsflag_wait(L_QFLAG, 10, 12, 8)
    a.label('L_wo')
    wo_issue()
    a('v_and_b32 v4, 7, v1'); a('v_lshlrev_b32 v4, 4, v4')
    a('s_lshl_b32 s15, s46, 7'); a('s_add_u32 s15, s15, 0x%x' % W_RDYA)
    poll2(['buffer_load_dwordx4 v[28:31], v4, s[48:51], s15 offen sc1'], tagcheck([28]), 'rdyo', sleep=P['mlsleep'])
    a('v_lshrrev_b32 v9, 5, v1'); a('v_lshlrev_b32 v9, 4, v9'); a('v_xor_b32 v9, v9, v4')
    a('s_lshl_b32 s65, s46, 7'); a('s_add_u32 s65, s65, 0x%x' % W_OM)
    stamp(5)
    spare = 160
    wp = []
    for n in range(16):
        lo, hi, spare = pairperm([96 + 4 * n, 97 + 4 * n], [98 + 4 * n, 99 + 4 * n], spare)
        wp.append((lo, hi))
    for k in range(4): a('v_mov_b32 v%d, 0' % (16 + k))
    a('v_lshlrev_b32 v5, 4, v1')
    a('s_lshl_b32 s15, s46, 12'); a('s_add_u32 s15, s15, 0x%x' % W_OX)
    a('v_lshrrev_b32 v6, 4, v1'); a('v_mul_u32_u24 v8, %d, v6' % YSC); a('v_lshl_add_u32 v6, v3, 2, v6'); a('v_lshlrev_b32 v6, 2, v6')
    a('s_lshl_b32 s12, s11, 8'); a('v_add_u32 v6, s12, v6')
    a('v_lshlrev_b32 v7, 4, v3'); a('v_add_u32 v8, v8, v7')
    a('s_mul_i32 s64, s4, 2304'); a('s_lshl_b32 s13, s9, 8'); a('s_add_u32 s64, s64, s13'); a('s_add_u32 s64, s64, 0x%x' % W_YS)
    stamp(6)
    ldscnt_wait(L_OCNT, 10, 12, 8, 2)
    def oxcheck():
        DP = ('quad_perm:[1,0,3,2]', 'quad_perm:[2,3,0,1]', 'row_half_mirror')
        a('v_max_f32_dpp v50, v48, v48 %s row_mask:0xf bank_mask:0xf' % DP[0])
        for d in DP[1:]: a('v_max_f32_dpp v50, v50, v50 %s row_mask:0xf bank_mask:0xf' % d)
        a('v_max_u32 v51, v48, v49')
        a('v_sub_f32 v48, v48, v50'); a('v_mul_f32 v48, 0x%x, v48' % LOG2E); a('v_exp_f32 v48, v48')
        a('v_cmp_eq_u32 s[12:13], -1, v51')
        a('v_mul_f32 v49, v49, v48')
        for d in DP: a('v_add_f32_dpp v49, v49, v49 %s row_mask:0xf bank_mask:0xf' % d)
        a('v_rcp_f32 v49, v49')
        a('v_mul_f32 v48, v48, v49')
        for k in range(4): a('v_mov_b32_dpp v%d, v48 row_newbcast:%d row_mask:0xf bank_mask:0xf' % (40 + 2 * k, 2 * k))
        for hh in (0, 2): a('v_pk_mul_f32 v[%d:%d], v[%d:%d], v[40:41] op_sel_hi:[1,0]' % (24 + hh, 25 + hh, 24 + hh, 25 + hh))
        for k in range(1, 4):
            for hh in (0, 2):
                a('v_pk_fma_f32 v[%d:%d], v[%d:%d], v[%d:%d], v[%d:%d] op_sel_hi:[1,0,1]' % (24 + hh, 25 + hh, 24 + 4 * k + hh, 25 + 4 * k + hh, 40 + 2 * k, 41 + 2 * k, 24 + hh, 25 + hh))
        a('v_permlane32_swap_b32 v24, v26'); a('v_permlane32_swap_b32 v25, v27')
        a('v_add_f32 v24, v24, v26'); a('v_add_f32 v25, v25, v27')
        a('v_max_u32 v26, v24, v25')
        a('v_cvt_pk_bf16_f32 v28, v24, v25')
        a('v_cmp_eq_u32 vcc, -1, v26')
        a('s_or_b64 vcc, vcc, s[12:13]')
    poll2(['buffer_load_dwordx2 v[48:49], v9, s[48:51], s65 offen sc1'] + ['buffer_load_dwordx4 v[%d:%d], v5, s[48:51], s15 offen offset:%d sc1' % (24 + 4 * k, 27 + 4 * k, 1024 * k) for k in range(4)], oxcheck, 'ox', sleep=P['oxsleep'])
    stamp(7)
    for n in range(16):
        lo, hi = wp[n]
        for k in range(2):
            a('v_dot2c_f32_bf16_dpp v%d, v28, v%d row_newbcast:%d row_mask:0xf bank_mask:0xf' % (16 + 2 * k, lo[k], n))
            a('v_dot2c_f32_bf16_dpp v%d, v28, v%d row_newbcast:%d row_mask:0xf bank_mask:0xf' % (17 + 2 * k, hi[k], n))
    a('v_permlane32_swap_b32 v16, v18'); a('v_permlane32_swap_b32 v17, v19')
    a('v_add_f32 v16, v16, v18'); a('v_add_f32 v17, v17, v19')
    a('v_permlane16_swap_b32 v16, v17')
    a('v_add_f32 v16, v16, v17')
    a('ds_write_b32 v6, v16 offset:%d' % L_WPART)
    a('s_waitcnt lgkmcnt(0)')
    stamp(8)
    a('s_barrier')
    a('s_cmp_lg_u32 s11, 0')
    a.branch('s_cbranch_scc1 L_wo_end')
    for w in range(4): a('ds_read_b128 v[%d:%d], v7 offset:%d' % (24 + 4 * w, 27 + 4 * w, L_WPART + 256 * w))
    a('s_waitcnt lgkmcnt(0)')
    tree_add4([24, 28, 32, 36])
    for k in range(4): a('v_min_u32 v%d, -2, v%d' % (24 + k, 24 + k))
    a('buffer_store_dwordx4 v[24:27], v8, s[48:51], s64 offen sc1')
    a.label('L_wo_end')
    endwave(9)

    a.label('L_reducer')
    if P['abl'] == 4: endwave(1)
    a('s_setprio 0')
    a('v_lshlrev_b32 v5, 4, v1'); a('v_add_u32 v6, 128, v1'); a('v_min_u32 v6, 143, v6'); a('v_lshlrev_b32 v6, 4, v6')
    a('s_mov_b32 s15, 0x%x' % W_RDYB)
    a('v_and_b32 v7, 3, v1'); a('v_lshlrev_b32 v8, 4, v7')
    a('s_lshl_b32 s64, s9, 6'); a('s_add_u32 s65, s64, 0x%x' % (W_MOD + 3 * 4096)); a('s_add_u32 s64, s64, 0x%x' % W_MOD)
    ldsflag_wait(L_TRIG, 10, 12, 8)
    poll2(['buffer_load_dwordx4 v[%d:%d], v5, s[48:51], s15 offen offset:%d sc1' % (32 + 4 * k, 35 + 4 * k, 1024 * k) for k in range(2)] +
          ['buffer_load_dwordx4 v[44:47], v6, s[48:51], s15 offen sc1',
           'buffer_load_dwordx4 v[24:27], v8, s[48:51], s64 offen sc1', 'buffer_load_dwordx4 v[28:31], v8, s[48:51], s65 offen sc1'],
          tagcheck([24, 28, 32, 36, 44]), 'rdyr', sleep=8)
    a('v_bfe_u32 v12, v1, 3, 1'); a('v_bfe_u32 v13, v1, 2, 1')
    a('v_lshlrev_b32 v7, 2, v7'); a('v_lshl_add_u32 v7, v12, 1, v7'); a('v_add_u32 v7, v7, v13')
    a('v_lshlrev_b32 v64, 1, v7')
    srd(64, 16, 17, 1152)
    a('s_lshl_b32 s15, s9, 5')
    a('buffer_load_ushort v60, v64, s[64:67], s15 offen')
    a('v_cmp_eq_u32 s[68:69], 1, v12'); a('v_cmp_eq_u32 s[70:71], 1, v13')
    for src, dst in ((24, 61), (28, 62)):
        a('v_cndmask_b32 v14, v%d, v%d, s[68:69]' % (src, src + 1))
        a('v_lshlrev_b32 v15, 16, v14'); a('v_and_b32 v14, s78, v14')
        a('v_cndmask_b32 v%d, v15, v14, s[70:71]' % dst)
    a('s_waitcnt vmcnt(0)')
    a('v_lshlrev_b32 v60, 16, v60')
    srd(64, 38, 39, 1152)
    a('s_lshl_b32 s52, s9, 6'); a('s_add_u32 s52, s52, 0x%x' % W_YS)
    for k in range(1, 4): a('s_add_u32 s%d, s%d, 4608' % (52 + k, 51 + k))
    a('s_mul_i32 s56, s9, %d' % DSR); a('s_add_u32 s56, s56, 0x%x' % W_DS); a('s_add_u32 s57, s56, 4096')
    for k in range(4): a('v_mov_b32 v%d, 0' % (112 + k))
    ldscnt_wait(L_OCNT, 10, 12, 8, 4)
    stamp(6)
    def yscheck():
        tree_add4([24 + 4 * k for k in range(8)])
        a('v_max3_u32 v28, v24, v25, v26'); a('v_max_u32 v28, v28, v27')
        a('v_cmp_eq_u32 vcc, -1, v28')
    poll2(['buffer_load_dwordx4 v[%d:%d], v8, s[48:51], s%d offen offset:%d sc1' % (24 + 4 * k, 27 + 4 * k, 52 + (k >> 1), (k & 1) * 2304) for k in range(8)], yscheck, 'ysr', sleep=1)
    stamp(7)
    a('v_cndmask_b32 v24, v24, v26, s[68:69]'); a('v_cndmask_b32 v25, v25, v27, s[68:69]')
    a('v_cndmask_b32 v16, v24, v25, s[70:71]')
    rnd1(16); a('v_mul_f32 v16, v16, v61'); rnd1(16); a('v_add_f32 v60, v60, v16'); rnd1(60)
    a('s_lshl_b32 s15, s9, 5')
    def dscheck():
        pass
    lp = L('ds'); dn = L('dsd'); nl = 5
    a('s_mov_b32 s14, %d' % POLL_LIMIT)
    a.label(lp)
    for k in range(nl):
        if k == 4: a('s_mov_b32 exec_hi, 0')
        a('buffer_load_dwordx4 v[%d:%d], v5, s[48:51], s%d offen offset:%d sc1' % (96 + 4 * k, 99 + 4 * k, 56 + (k >> 2), (k & 3) * 1024))
    a('s_mov_b32 exec_hi, -1')
    a('s_waitcnt vmcnt(%d)' % (nl - 2))
    for hh in (0, 2): a('v_pk_add_f32 v[%d:%d], v[%d:%d], v[%d:%d]' % (16 + hh, 17 + hh, 96 + hh, 97 + hh, 100 + hh, 101 + hh))
    for k in range(2, nl):
        if k % 2 == 0: a('s_waitcnt vmcnt(%d)' % max(0, nl - k - 2))
        for hh in (0, 2): a('v_pk_add_f32 v[%d:%d], v[%d:%d], v[%d:%d]' % (16 + hh, 17 + hh, 16 + hh, 17 + hh, 96 + 4 * k + hh, 97 + 4 * k + hh))
    for k in range(2): a('v_add_f32_dpp v%d, v%d, v%d row_ror:8 row_mask:0xf bank_mask:0x3' % (16 + k, 16 + k, 16 + k))
    for k in range(2): a('v_add_f32_dpp v%d, v%d, v%d row_ror:8 row_mask:0xf bank_mask:0xc' % (16 + k, 18 + k, 18 + k))
    a('v_add_f32_dpp v16, v16, v16 row_shl:4 row_mask:0xf bank_mask:0x5')
    a('v_add_f32_dpp v16, v17, v17 row_shr:4 row_mask:0xf bank_mask:0xa')
    for sw in ('v_permlane16_swap_b32', 'v_permlane32_swap_b32'):
        a('v_mov_b32 v17, v16'); a('%s v16, v17' % sw); a('v_add_f32 v16, v16, v17')
    a('v_cmp_eq_u32 vcc, -1, v16')
    a('s_cmp_eq_u64 vcc, 0')
    a.branch('s_cbranch_scc1 ' + dn)
    a('s_sub_u32 s14, s14, 1')
    a.branch('s_cbranch_scc0 ' + lp)
    a.label(dn)
    stamp(8)
    rnd1(16); a('v_mul_f32 v16, v16, v62'); rnd1(16); a('v_add_f32 v16, v60, v16')
    a('v_cvt_pk_bf16_f32 v16, v16, v16')
    a('s_mov_b64 exec, 0xffff')
    a('buffer_store_short v16, v64, s[64:67], s15 offen')
    a('s_cmp_lg_u32 s9, 0')
    a.branch('s_cbranch_scc1 L_red_end')
    a('v_mov_b32 v18, s44'); a('v_mov_b32 v19, s45')
    a('s_mov_b64 exec, 1')
    a('buffer_store_dwordx2 v[18:19], v10, s[48:51], 0 offen')
    a.label('L_red_end')
    endwave(9)

    a.label('L_exit')
    a('s_endpgm')

    head = open('adaLN_cond__mha_block_cached__swiglu_ffn__decode.s.ref').read().split('\n')
    hdr = [l for l in head if l.startswith(';') and '@launch' not in l and 'Override launch' not in l and 'grid=ceil' not in l]
    out = '\n'.join(hdr) + '\n'
    out += '; generated by gen3.py params: %s\n' % json.dumps(P, sort_keys=True)
    out += '; @launch grid=(256,1,1) block=(768,1,1) lds=%d\n' % L_SIZE
    out += '.amdgcn_target "amdgcn-amd-amdhsa--gfx950"\n.text\n.globl %s\n.p2align 8\n.type %s,@function\n' % (KNAME, KNAME)
    out += a.text()
    assert a.maxv < 168, a.maxv
    out += '''.section .rodata,"a"
.p2align 6
.amdhsa_kernel %s
  .amdhsa_next_free_vgpr 168
  .amdhsa_next_free_sgpr 102
  .amdhsa_accum_offset 168
  .amdhsa_group_segment_fixed_size 0
  .amdhsa_kernarg_size 112
  .amdhsa_user_sgpr_count 2
  .amdhsa_user_sgpr_kernarg_segment_ptr 1
  .amdhsa_system_sgpr_workgroup_id_x 1
  .amdhsa_float_denorm_mode_32 3
.end_amdhsa_kernel
''' % KNAME
    return out

if __name__ == '__main__':
    kw = {}
    outp = sys.argv[1]
    for x in sys.argv[2:]:
        k, v = x.split('='); kw[k] = int(v)
    open(outp, 'w').write(gen(**kw))
```

```python
import sys, json
from asmlib import Asm, VM

KNAME = 'adaLN_cond__mha_block_cached__swiglu_ffn__decode_kernel'

W_MODP = 0x1000
W_MOD = 0xA000
W_RDYA = 0xE000
W_RDYB = 0xF000
W_QP = 0x10000
W_OM = 0x50000
W_CNT = 0x54000
W_OX = 0x60000
W_YS = 0x80000
YSC = 18432
W_DS = 0x100000
W_DIAG = 0x200000
W_SIZE = 0x400000
L_QFLAG = 0; L_TRIG = 4; L_FSFLAG = 8; L_OCNT = 12; L_MCNT = 16
L_QS = 64; L_FS = 320; L_H1S = 384; L_MPART = 9728
L_OPART = 1024; L_X2 = 5120; L_GU = 7680; L_WPART = 9728; L_DPART = 11264
L_SIZE = 11264 + 8 * 2304
DSR = 4608
def mktab(RF, RW, RL, RU, RN):
    role = lambda a: RF if a < 9 else RW if a < 18 else RL if a < 23 else RU if a < 28 else RN
    return [[role(AMAP[j][sp]) for sp in range(8)] for j in range(4)]
AMAP1 = [[0,4,8,28,29,30,27,9],[1,5,31,12,15,18,21,24],[2,6,10,13,16,19,22,25],[3,7,11,14,17,20,23,26]]
AMAP0 = [[4 * sp + j for sp in range(8)] for j in range(4)]
AMAP = AMAP1
LOG2E = 0x3fb8aa3b
SCALE = 0x3db504f3
INV576 = 0x3ae38e39
EPS = 0x3727c5ac
POLL_LIMIT = 400000

DEF = dict(diag=0, N=4, N0=2, N1=4, interleave=1, kv_nt=1, w_nt=1, trig=64, sleep=0, mlsleep=8, nslots=36, early_v=4, prio=3, wN=8, so=0, bprio=1, Nend=0, endk=12, h1sleep=4, qpsleep=4, qp0=4, fN=8, vgap=1, b0e=1, yssleep=0, oxsleep=0, fprio=0, abl=0, noclr=0, nowq=0, fonly=0, mod256=0, RF=18, RW=30, RL=30, RU=31, RN=32, clead=1, cleadF=0, xmap=1, evF=18, oxK=1, dsK=1, ysK=1, stg=6, amap=1, dssleep=0, rsleep=1, cF=2, fdiag=0, dryF=0, dryC=0, dryW=0, FN1=4, tap=0)

def gen(**kw):
    P = dict(DEF); P.update(kw)
    a = Asm()
    global AMAP
    AMAP = AMAP1 if P['amap'] else AMAP0
    NTAB = mktab(P['RF'], P['RW'], P['RL'], P['RU'], P['RN'])
    U = 2
    DIAG = P['diag']
    NT = ' nt' if P['kv_nt'] else ''
    WNT = ' nt' if P['w_nt'] else ''
    uid = [0]
    def L(n):
        uid[0] += 1
        return 'L_%s_%d' % (n, uid[0])
    def stamp(k):
        if DIAG: a('s_memrealtime s[%d:%d]' % (80 + 2 * k, 81 + 2 * k))
    def srd(d, lo, hi, size):
        a('s_mov_b32 s%d, s%d' % (d, lo)); a('s_mov_b32 s%d, s%d' % (d + 1, hi))
        a('s_mov_b32 s%d, 0x%x' % (d + 2, size)); a('s_mov_b32 s%d, 0x00020000' % (d + 3))
    def srd_off(d, lo, hi, off_sreg, size_total):
        a('s_add_u32 s%d, s%d, s%d' % (d, lo, off_sreg)); a('s_addc_u32 s%d, s%d, 0' % (d + 1, hi))
        a('s_sub_u32 s%d, 0x%x, s%d' % (d + 2, size_total, off_sreg)); a('s_mov_b32 s%d, 0x00020000' % (d + 3))
    def endwave(nst):
        if DIAG:
            stamp(9)
            a('s_waitcnt lgkmcnt(0)')
            a('s_mov_b64 exec, -1')
            a('v_mov_b32 v2, 0')
            for k in range(10):
                a('v_writelane_b32 v2, s%d, %d' % (80 + 2 * k, k))
            a('s_getreg_b32 s12, hwreg(HW_REG_XCC_ID)')
            a('v_writelane_b32 v2, s12, 10')
            a('s_getreg_b32 s12, hwreg(HW_REG_HW_ID)')
            a('v_writelane_b32 v2, s12, 11')
            a('s_mul_i32 s12, s2, 12'); a('s_add_u32 s12, s12, s3'); a('s_lshl_b32 s12, s12, 6')
            a('s_add_u32 s12, s12, 0x%x' % W_DIAG)
            a('v_lshlrev_b32 v3, 2, v1')
            a('s_mov_b64 exec, 0xffff')
            a('buffer_store_dword v2, v3, s[48:51], s12 offen')
        a('s_endpgm')
    def poll(loads, check, name):
        lp = L(name); dn = L(name + 'd')
        a('s_mov_b32 s14, %d' % POLL_LIMIT)
        a.label(lp)
        for t in loads: a(t)
        a('s_waitcnt vmcnt(0)')
        check()
        a('s_cmp_eq_u64 vcc, 0')
        a.branch('s_cbranch_scc1 ' + dn)
        if P['sleep']: a('s_sleep %d' % P['sleep'])
        a('s_sub_u32 s14, s14, 1')
        a.branch('s_cbranch_scc0 ' + lp)
        a.label(dn)
    def tagcheck(regs):
        def f():
            a('v_cmp_ne_u64 vcc, s[44:45], v[%d:%d]' % (regs[0] + 2, regs[0] + 3))
            for r in regs[1:]:
                a('v_cmp_ne_u64 s[12:13], s[44:45], v[%d:%d]' % (r + 2, r + 3))
                a('s_or_b64 vcc, vcc, s[12:13]')
        return f
    def ldsflag_wait(off, vz, vt, sleep):
        lp = L('fw')
        a.label(lp)
        a('ds_read_b32 v%d, v%d offset:%d' % (vt, vz, off))
        a('s_waitcnt lgkmcnt(0)')
        a('v_readfirstlane_b32 s12, v%d' % vt)
        a('s_cmp_lg_u32 s12, 0')
        dn = L('fwd')
        a.branch('s_cbranch_scc1 ' + dn)
        a('s_sleep %d' % sleep)
        a.branch('s_branch ' + lp)
        a.label(dn)
    def allred(regs, tmps, op):
        for sh in (8, 4, 2, 1):
            for r in regs: a('%s_dpp v%d, v%d, v%d row_ror:%d row_mask:0xf bank_mask:0xf' % (op, r, r, r, sh))
        for sw in ('v_permlane16_swap_b32', 'v_permlane32_swap_b32'):
            for r, t in zip(regs, tmps): a('v_mov_b32 v%d, v%d' % (t, r))
            for r, t in zip(regs, tmps): a('%s v%d, v%d' % (sw, r, t))
            for r, t in zip(regs, tmps): a('%s v%d, v%d, v%d' % (op, r, r, t))
    def red8_g(acc):
        for k in range(4): a('v_permlane32_swap_b32 v%d, v%d' % (acc[k], acc[k + 4]))
        for k in range(4): a('v_add_f32 v%d, v%d, v%d' % (acc[k], acc[k], acc[k + 4]))
        for k in range(2): a('v_permlane16_swap_b32 v%d, v%d' % (acc[k], acc[k + 2]))
        for k in range(2): a('v_add_f32 v%d, v%d, v%d' % (acc[k], acc[k], acc[k + 2]))
    def pairperm(A, B, spare):
        lo = []; hi = []
        for x, y in zip(A, B):
            a('v_perm_b32 v%d, v%d, v%d, s76' % (spare, y, x))
            a('v_perm_b32 v%d, v%d, v%d, s77' % (y, y, x))
            lo.append(spare); hi.append(y); spare = x
        return lo, hi, spare
    def rnd2(x, y, t):
        a('v_cvt_pk_bf16_f32 v%d, v%d, v%d' % (t, x, y))
        a('v_lshlrev_b32 v%d, 16, v%d' % (x, t))
        a('v_and_b32 v%d, s78, v%d' % (y, t))
    def rnd1(x):
        a('v_cvt_pk_bf16_f32 v%d, v%d, v%d' % (x, x, x))
        a('v_and_b32 v%d, s78, v%d' % (x, x))
    def ln_stats(xs, s1, s2, t1, t2):
        a('v_mul_f32 v%d, v%d, v%d' % (s2, xs[0], xs[0]))
        a('v_add_f32 v%d, v%d, v%d' % (s1, xs[0], xs[1]))
        a('v_fmac_f32 v%d, v%d, v%d' % (s2, xs[1], xs[1]))
        for x in xs[2:]:
            a('v_add_f32 v%d, v%d, v%d' % (s1, s1, x))
            a('v_fmac_f32 v%d, v%d, v%d' % (s2, x, x))
        allred([s1, s2], [t1, t2], 'v_add_f32')
        a('v_mul_f32 v%d, 0x%x, v%d' % (s1, INV576, s1))
        a('v_mul_f32 v%d, 0x%x, v%d' % (s2, INV576, s2))
        a('v_fma_f32 v%d, -v%d, v%d, v%d' % (s2, s1, s1, s2))
        a('v_max_f32 v%d, 0, v%d' % (s2, s2))
        rnd2(s1, s2, t1)
        a('v_add_f32 v%d, 0x%x, v%d' % (s2, EPS, s2))
        rnd1(s2)
        a('v_sqrt_f32 v%d, v%d' % (s2, s2))
        rnd1(s2)
        a('v_rcp_f32 v%d, v%d' % (s2, s2))
    def ln_apply(pairs, mean, rs, t):
        for (x0, x1, c0, c1, s0, s1, o) in pairs:
            a('v_sub_f32 v%d, v%d, v%d' % (x0, x0, mean)); a('v_sub_f32 v%d, v%d, v%d' % (x1, x1, mean))
        for (x0, x1, c0, c1, s0, s1, o) in pairs: rnd2(x0, x1, o)
        for (x0, x1, c0, c1, s0, s1, o) in pairs:
            a('v_mul_f32 v%d, v%d, v%d' % (x0, x0, rs)); a('v_mul_f32 v%d, v%d, v%d' % (x1, x1, rs))
        for (x0, x1, c0, c1, s0, s1, o) in pairs: rnd2(x0, x1, o)
        for (x0, x1, c0, c1, s0, s1, o) in pairs:
            a('v_mul_f32 v%d, v%d, v%d' % (x0, x0, c0)); a('v_mul_f32 v%d, v%d, v%d' % (x1, x1, c1))
        for (x0, x1, c0, c1, s0, s1, o) in pairs: rnd2(x0, x1, o)
        for (x0, x1, c0, c1, s0, s1, o) in pairs:
            a('v_add_f32 v%d, v%d, v%d' % (x0, x0, s0)); a('v_add_f32 v%d, v%d, v%d' % (x1, x1, s1))
        for (x0, x1, c0, c1, s0, s1, o) in pairs: a('v_cvt_pk_bf16_f32 v%d, v%d, v%d' % (o, x0, x1))
    def silu(xs, ts):
        for x, t in zip(xs, ts): a('v_mul_f32 v%d, 0x%x, v%d' % (t, LOG2E ^ 0x80000000, x))
        for x, t in zip(xs, ts): a('v_exp_f32 v%d, v%d' % (t, t))
        for x, t in zip(xs, ts): a('v_add_f32 v%d, 1.0, v%d' % (t, t))
        for x, t in zip(xs, ts): a('v_rcp_f32 v%d, v%d' % (t, t))
        for x, t in zip(xs, ts): a('v_mul_f32 v%d, v%d, v%d' % (x, x, t))
    def sum_publish(nparts, lbase, wsbase, rstride, idreg, wv):
        a('s_mul_i32 s12, s%d, 48' % wv)
        a('v_add_u32 v4, s12, v1')
        a('v_lshlrev_b32 v5, 4, v4')
        a('v_lshrrev_b32 v6, 2, v4')
        a('s_mov_b32 s13, %d' % rstride)
        a('v_mul_lo_u32 v6, s13, v6')
        a('v_and_b32 v7, 3, v4')
        a('v_lshl_add_u32 v6, v7, 4, v6')
        a('s_lshl_b32 s12, s%d, 6' % idreg)
        a('s_add_u32 s15, s12, 0x%x' % wsbase)
    def sum_publish2(nparts, lbase):
        a('s_mov_b32 exec_lo, -1'); a('s_mov_b32 exec_hi, 0xffff')
        for k in range(nparts):
            a('ds_read_b128 v[%d:%d], v5 offset:%d' % (24 + 4 * k, 27 + 4 * k, lbase + k * 2304))
        n = nparts; step = 1
        a('s_waitcnt lgkmcnt(0)')
        while step < nparts:
            for k in range(0, nparts, 2 * step):
                for hh in (0, 2):
                    x = 24 + 4 * k + hh; y = 24 + 4 * (k + step) + hh
                    a('v_pk_add_f32 v[%d:%d], v[%d:%d], v[%d:%d]' % (x, x + 1, x, x + 1, y, y + 1))
            step *= 2
        for k in range(4): a('v_min_u32 v%d, -2, v%d' % (24 + k, 24 + k))
        a('buffer_store_dwordx4 v[24:27], v6, s[48:51], s15 offen sc1')

    def poll2(loads, check, name, filler=None, sleep=0):
        lp = L(name); dn = L(name + 'd'); wt = L(name + 'w')
        a('s_mov_b32 s14, %d' % POLL_LIMIT)
        if filler:
            for t in loads: a(t)
            filler()
            a.branch('s_branch ' + wt)
        a.label(lp)
        for t in loads: a(t)
        if filler: a.label(wt)
        a('s_waitcnt vmcnt(0)')
        check()
        a('s_cmp_eq_u64 vcc, 0')
        a.branch('s_cbranch_scc1 ' + dn)
        if sleep: a('s_sleep %d' % sleep)
        a('s_sub_u32 s14, s14, 1')
        a.branch('s_cbranch_scc0 ' + lp)
        a.label(dn)
    def poll_rot(K, issue, check, n, name, sleep=0):
        lp = L(name); dn = L(name + 'd')
        a('s_mov_b32 s14, %d' % POLL_LIMIT)
        for k in range(K):
            issue(k)
            if k < K - 1: a('s_sleep %d' % P['stg'])
        a.label(lp)
        for k in range(K):
            a('s_waitcnt vmcnt(%d)' % ((K - 1) * n))
            check(k)
            a('s_cmp_eq_u64 vcc, 0')
            a.branch('s_cbranch_scc1 ' + dn)
            if sleep: a('s_sleep %d' % sleep)
            issue(k)
        a('s_sub_u32 s14, s14, 1')
        a.branch('s_cbranch_scc0 ' + lp)
        a.label(dn)
    def ldscnt_wait(off, vz, vt, minval, sleep):
        lp = L('cw'); dn = L('cwd')
        a.label(lp)
        a('ds_read_b32 v%d, v%d offset:%d' % (vt, vz, off))
        a('s_waitcnt lgkmcnt(0)')
        a('v_readfirstlane_b32 s12, v%d' % vt)
        a('s_cmp_ge_u32 s12, %d' % minval)
        a.branch('s_cbranch_scc1 ' + dn)
        a('s_sleep %d' % sleep)
        a.branch('s_branch ' + lp)
        a.label(dn)
    def tree_add4(bases):
        step = 1; n = len(bases)
        while step < n:
            for k in range(0, n, 2 * step):
                for hh in (0, 2):
                    x = bases[k] + hh; y = bases[k + step] + hh
                    a('v_pk_add_f32 v[%d:%d], v[%d:%d], v[%d:%d]' % (x, x + 1, x, x + 1, y, y + 1))
            step *= 2
    def half_reduce_write(Y, vA, vC, lbase):
        prs = [(Y[k], Y[k + 4]) for k in range(4)] + [(Y[8 + k], Y[12 + k]) for k in range(4)] + [(Y[16], Y[17])]
        for x, y in prs: a('v_permlane32_swap_b32 v%d, v%d' % (x, y))
        for x, y in prs: a('v_add_f32 v%d, v%d, v%d' % (x, x, y))
        a('ds_write_b128 v%d, v[%d:%d] offset:%d' % (vA, Y[0], Y[0] + 3, lbase))
        a('ds_write_b128 v%d, v[%d:%d] offset:%d' % (vA, Y[8], Y[8] + 3, lbase + 1024))
        a('ds_write_b32 v%d, v%d offset:%d' % (vC, Y[16], lbase + 2048))
    def tag_ready():
        a('s_waitcnt lgkmcnt(0)')
        a('s_add_u32 s44, s44, 0x7f4a7c15'); a('s_addc_u32 s45, s45, 0x9e3779b9')

    a.raw(KNAME + ':')
    a('s_cmp_ge_u32 s2, 256')
    a.branch('s_cbranch_scc1 L_exit')
    a('s_load_dwordx16 s[16:31], s[0:1], 0')
    a('s_load_dwordx8 s[32:39], s[0:1], 64')
    a('s_load_dwordx4 s[40:43], s[0:1], 96')
    if DIAG:
        for k in range(80, 100): a('s_mov_b32 s%d, 0' % k)
    stamp(0)
    a('v_lshrrev_b32 v2, 6, v0')
    a('v_and_b32 v1, 63, v0')
    a('v_readfirstlane_b32 s3, v2')
    a('s_and_b32 s4, s2, 7')
    a('s_lshr_b32 s5, s2, 3')
    inv = {AMAP[j][sp]: 4 * sp + j for j in range(4) for sp in range(8)}
    for k in range(8): a('s_mov_b32 s%d, 0x%x' % (56 + k, sum(inv[4 * k + i] << (8 * i) for i in range(4))))
    a('s_lshr_b32 m0, s5, 2'); a('s_and_b32 s13, s5, 3'); a('s_lshl_b32 s13, s13, 3')
    a('s_movrels_b32 s14, s56')
    a('s_lshr_b32 s14, s14, s13')
    a('s_bfe_u32 s7, s14, 0x30002')
    if P['xmap']:
        a('s_add_u32 s12, s4, s7'); a('s_and_b32 s12, s12, 7'); a('s_lshl_b32 s12, s12, 2')
    else: a('s_lshl_b32 s12, s4, 2')
    a('s_and_b32 s6, s14, 3'); a('s_add_u32 s6, s6, s12')
    a('s_lshl_b32 s8, s6, 3'); a('s_add_u32 s8, s8, s7')
    a('s_mov_b32 s72, 0xcccccccc'); a('s_mov_b32 s73, 0xcccccccc')
    a('s_mov_b32 s74, 0xaaaaaaaa'); a('s_mov_b32 s75, 0xaaaaaaaa')
    a('s_mov_b32 s76, 0x05040100'); a('s_mov_b32 s77, 0x07060302'); a('s_mov_b32 s78, 0xffff0000')
    a('v_mov_b32 v10, 0'); a('v_mov_b32 v11, 1')
    a('v_lshlrev_b32 v4, 4, v1'); a('v_lshlrev_b32 v2, 2, v1')
    a('s_cmp_lg_u32 s3, 8')
    a.branch('s_cbranch_scc1 L_noinit')
    a('s_mov_b64 exec, 0xff')
    a('ds_write_b32 v2, v10 offset:0')
    a('s_mov_b64 exec, -1')
    a.label('L_noinit')
    a('s_cmp_ge_u32 s3, 8')
    a.branch('s_cbranch_scc1 L_helper')

    starts = [[sum(NTAB[j][:sp]) for sp in range(8)] for j in range(4)]
    SJ = [sum(NTAB[j]) for j in range(4)]
    for j in range(4): assert SJ[j] < 256
    for sp in range(8):
        a('s_mov_b32 s%d, 0x%x' % (56 + sp, sum(starts[j][sp] << (8 * j) for j in range(4))))
        a('s_mov_b32 s%d, 0x%x' % (64 + sp, sum(NTAB[j][sp] << (8 * j) for j in range(4))))
    a('s_mov_b32 m0, s7')
    a('s_and_b32 s14, s6, 3'); a('s_lshl_b32 s14, s14, 3')
    a('s_movrels_b32 s12, s56'); a('s_movrels_b32 s9, s64')
    a('s_lshr_b32 s12, s12, s14'); a('s_and_b32 s12, s12, 0xff'); a('s_lshr_b32 s9, s9, s14'); a('s_and_b32 s9, s9, 0xff')
    a('s_lshl_b32 s12, s12, 13'); a('s_lshl_b32 s13, s6, 21'); a('s_add_u32 s12, s12, s13')
    a('s_lshl_b32 s13, s3, 10')
    a('v_add_u32 v2, s13, v4')
    a('s_lshl_b32 s54, s9, 13'); a('s_mov_b32 s55, 0x00020000')
    a('s_waitcnt lgkmcnt(0)')
    if P['b0e']: a('s_barrier')
    a('s_load_dwordx2 s[44:45], s[42:43], 0')
    a('s_add_u32 s52, s18, s12'); a('s_addc_u32 s53, s19, 0')
    a('s_cmp_lt_u32 s5, 9')
    a.branch('s_cbranch_scc1 L_attF')
    STEP = 8192
    NS = 36
    sreg = lambda s: 24 + 4 * s
    def attention(R, ffn):
        vm = VM(a)
        free = list(range(NS))
        kslot = {}; vslot = {}
        NN = [P['FN1'] if ffn else P['N1']]
        nb = (R + 15) // 16
        for j in range(4):
            for sp in range(8):
                if (AMAP[j][sp] < 9) == ffn: assert 16 * (nb - 1) < NTAB[j][sp] <= R
        def ld_kv(kind, j):
            s = free.pop(0)
            (kslot if kind == 'K' else vslot)[j] = s
            vm.throttle(NN[0])
            a('s_mov_b32 s11, 0x%x' % (j * STEP))
            vm.issue((kind, j), 'buffer_load_dwordx4 v[%d:%d], v2, s[%d:%d], s11 offen%s' % (sreg(s), sreg(s) + 3, *((52, 55) if kind == 'K' else (56, 59)), NT))
        for j in range(P['N0']): ld_kv('K', j)
        a('s_add_u32 s56, s20, s12'); a('s_addc_u32 s57, s21, 0'); a('s_mov_b32 s58, s54'); a('s_mov_b32 s59, s55')
        srd(48, 42, 43, W_SIZE)
        a('s_sub_u32 s13, s9, %d' % (16 * (nb - 1))); a('s_bfm_b32 s60, s13, 0'); a('s_mul_i32 s60, s60, 0x10001'); a('s_mov_b32 s61, s60')
        for k in range(8): a('v_mov_b32 v%d, 0' % (16 + k))
        a('v_and_b32 v3, 15, v1'); a('v_lshlrev_b32 v13, 4, v3'); a('v_lshlrev_b32 v3, 5, v3'); a('v_lshrrev_b32 v5, 4, v1')
        a('v_lshl_add_u32 v3, v5, 3, v3'); a('s_lshl_b32 s12, s3, 9'); a('v_add_u32 v3, s12, v3')
        a('s_lshl_b32 s15, s8, 9'); a('s_add_u32 s15, s15, 0x%x' % W_OX)
        if not P['b0e']: a('s_barrier')
        for j in range(P['N0'], R): ld_kv('K', j)
        EV = min(P['evF'] if ffn else P['early_v'], NS - R, R)
        for j in range(EV): ld_kv('V', j)
        G = []
        def ld_g(n_, prog):
            s_ = sreg(free.pop(0)); G.append(s_)
            for e in range(2):
                vm.throttle(P['fN'])
                a('s_mov_b32 s11, %d' % ((2 * n_ + e) * 9216))
                vm.issue('g', 'buffer_load_dwordx2 v[%d:%d], v5, s[64:67], s11 offen%s' % (s_ + 2 * e, s_ + 2 * e + 1, WNT))
                if prog: prog()
        if ffn:
            a('s_mul_i32 s9, s4, 9'); a('s_add_u32 s9, s9, s5'); a('s_lshr_b32 s79, s3, 1')
            a('s_bitcmp0_b32 s3, 0'); a('s_cselect_b32 s12, s28, s30'); a('s_cselect_b32 s13, s29, s31')
            a('s_lshl_b32 s14, s9, 7'); a('s_mul_i32 s46, s79, %d' % (144 * 9216)); a('s_add_u32 s14, s14, s46')
            srd_off(64, 12, 13, 14, 576 * 9216)
            a('v_lshrrev_b32 v5, 4, v1'); a('v_mul_u32_u24 v5, %d, v5' % (36 * 9216)); a('v_and_b32 v14, 15, v1'); a('v_lshl_add_u32 v5, v14, 3, v5')
            if EV == R:
                while free and len(G) < 18: ld_g(len(G), None)
        stamp(1)
        tag_ready()
        ldsflag_wait(L_QFLAG, 10, 12, 2)
        a('ds_read_b128 v[12:15], v13 offset:%d' % L_QS)
        a('s_waitcnt lgkmcnt(0)')
        stamp(2)
        NN[0] = P['N']
        S = [6, 7]; PH = [8, 9]
        if nb == 1: a('v_mov_b32 v7, 0xff800000')
        def kbatch(b):
            n = min(16, R - 16 * b)
            X = [sreg(kslot[16 * b + j]) for j in range(n)]
            for g in range(0, n, 4):
                js = list(range(g, min(n, g + 4)))
                vm.wait_tag(('K', 16 * b + js[-1]))
                for k in range(4):
                    for j in js:
                        a('v_dot2_f32_bf16 v%d, v%d, v%d, %s' % (X[j], X[j] + k, 12 + k, '0' if k == 0 else 'v%d' % X[j]))
            for i in range(min(n, 8)): a('v_add_f32_dpp v%d, v%d, v%d row_ror:8 row_mask:0xf bank_mask:0x3' % (X[i], X[i], X[i]))
            for i in range(8):
                if i + 8 < n: a('v_add_f32_dpp v%d, v%d, v%d row_ror:8 row_mask:0xf bank_mask:0xc' % (X[i], X[i + 8], X[i + 8]))
            for i in range(min(n, 4)): a('v_add_f32_dpp v%d, v%d, v%d row_shl:4 row_mask:0xf bank_mask:0x5' % (X[i], X[i], X[i]))
            for i in range(4):
                if i + 4 < n: a('v_add_f32_dpp v%d, v%d, v%d row_shr:4 row_mask:0xf bank_mask:0xa' % (X[i], X[i + 4], X[i + 4]))
            for i in range(min(n, 4)): a('v_add_f32_dpp v%d, v%d, v%d quad_perm:[2,3,0,1] row_mask:0xf bank_mask:0xf' % (X[i], X[i], X[i]))
            for i in range(2):
                if i + 2 < n: a('v_cndmask_b32 v%d, v%d, v%d, s[72:73]' % (X[i], X[i], X[i + 2]))
            for i in range(min(n, 2)): a('v_add_f32_dpp v%d, v%d, v%d quad_perm:[1,0,3,2] row_mask:0xf bank_mask:0xf' % (X[i], X[i], X[i]))
            if b == nb - 1:
                a('v_mov_b32 v%d, 0xff800000' % (X[0] + 1))
                a('v_cndmask_b32 v%d, v%d, v%d, s[74:75]' % (X[0], X[0], X[1]))
                a('v_cndmask_b32 v%d, v%d, v%d, s[60:61]' % (S[b], X[0] + 1, X[0]))
            else:
                a('v_cndmask_b32 v%d, v%d, v%d, s[74:75]' % (S[b], X[0], X[1]))
            for j in range(n): free.append(kslot[16 * b + j])
        nv = EV
        for b in range(nb):
            kbatch(b)
            last = ('K', min(R, 16 * b + 32) - 1)
            c = 0
            while nv < R and free and (c < P['vgap'] or (b < nb - 1 and last not in vm.q[:vm.done])):
                ld_kv('V', nv); nv += 1; c += 1
        stamp(3)
        rnd2(6, 7, 14)
        if nb == 3: rnd1(0)
        for s_ in S: a('v_mul_f32 v%d, 0x%x, v%d' % (s_, SCALE, s_))
        rnd2(6, 7, 14)
        if nb == 3:
            rnd1(0); a('v_max3_f32 v12, v6, v7, v0')
        else: a('v_max_f32 v12, v6, v7')
        allred([12], [14], 'v_max_f32')
        for s_ in S: a('v_sub_f32 v%d, v%d, v12' % (s_, s_))
        for s_ in S: a('v_mul_f32 v%d, 0x%x, v%d' % (s_, LOG2E, s_))
        for s_ in S: a('v_exp_f32 v%d, v%d' % (s_, s_))
        a('v_add_f32 v13, v6, v7')
        if nb == 3: a('v_add_f32 v13, v13, v0')
        for s_, h_ in zip(S, PH): a('v_cvt_pk_bf16_f32 v%d, 0, v%d' % (h_, s_))
        for s_ in S: a('v_cvt_pk_bf16_f32 v%d, v%d, 0' % (s_, s_))
        allred([13], [14], 'v_add_f32')
        a('v_mul_f32 v13, 0.25, v13')
        assert nb <= 2
        a('s_and_b32 s14, s6, 3'); a('s_lshl_b32 s14, s14, 3'); a('s_lshr_b32 s12, 0x%x, s14' % sum(SJ[j] << (8 * j) for j in range(4))); a('s_and_b32 s12, s12, 0xff')
        a('s_sub_u32 s69, 256, s12'); a('s_lshl_b32 s69, s69, 3')
        a('s_lshl_b32 s12, s12, 13'); a('s_lshl_b32 s13, s6, 21'); a('s_add_u32 s47, s12, s13')
        a('s_lshl_b32 s68, s6, 8'); a('s_add_u32 s68, s68, 0x%x' % W_CNT)
        CLAIM = 'buffer_atomic_add v0, v10, s[48:51], s68 offen sc0 sc1'
        def claim(track, t=None):
            if t is None or not P['tap']: a('v_mov_b32 v0, %d' % U)
            else:
                a('s_cmp_ge_u32 s%d, s63' % t); a('s_cselect_b32 s62, 1, 2')
                a('v_mov_b32 v0, s62')
            a('s_mov_b64 exec, 1')
            if track: vm.issue('claim', CLAIM)
            else: a(CLAIM)
            a('s_mov_b64 exec, -1')
        def unit_loads(B, t, track):
            a('s_lshl_b32 s11, s%d, 10' % t)
            if P['tap']:
                mk = 64 + 2 * (t - 70)
                a('s_add_u32 s12, s%d, s62' % t); a('s_min_u32 s12, s12, s69'); a('s_sub_u32 s12, s12, s%d' % t)
                a('s_cmp_eq_u32 s12, 2'); a('s_cselect_b64 s[%d:%d], -1, 0' % (mk, mk + 1)); a('s_cselect_b32 s13, s11, s54')
            for i in range(2 * U):
                txt = 'buffer_load_dwordx4 v[%d:%d], v4, s[%d:%d], s%d offen offset:%d%s' % (B[i], B[i] + 3, *((52, 55) if i < U else (56, 59)), 13 if (P['tap'] and i % U) else 11, 1024 * (i % U), NT)
                if track: vm.issue('u', txt)
                else: a(txt)
        def dyn_start():
            DA_ = [sreg(free.pop(0)) for _ in range(2 * U)]
            a('s_add_u32 s52, s18, s47'); a('s_addc_u32 s53, s19, 0'); a('s_lshl_b32 s54, s69, 10')
            a('s_add_u32 s56, s20, s47'); a('s_addc_u32 s57, s21, 0'); a('s_mov_b32 s58, s54')
            if P['tap']:
                a('s_mov_b32 s62, 2'); a('s_sub_u32 s63, s69, %d' % P['tap'])
            vm.wait_tag('claim')
            stamp(4)
            a('v_readfirstlane_b32 s70, v0')
            a('s_min_u32 s70, s70, s69')
            unit_loads(DA_, 70, True)
            claim(True, 70)
            return DA_
        def unit_proc(B, Q, t):
            X = B[:U]; V = B[U:]
            for k in range(4):
                for x in X: a('v_dot2_f32_bf16 v%d, v%d, v%d, %s' % (x, x + k, Q + k, '0' if k == 0 else 'v%d' % x))
            for sh in (8, 4, 2, 1):
                for x in X: a('v_add_f32_dpp v%d, v%d, v%d row_ror:%d row_mask:0xf bank_mask:0xf' % (x, x, x, sh))
            x0, x1 = X
            rnd2(x0, x1, 14)
            for x in X: a('v_mul_f32 v%d, 0x%x, v%d' % (x, SCALE, x))
            if P['tap']: a('v_mov_b32 v15, 0xff800000')
            rnd2(x0, x1, 14)
            if P['tap']: a('v_cndmask_b32 v%d, v15, v%d, s[%d:%d]' % (x1, x1, 64 + 2 * (t - 70), 65 + 2 * (t - 70)))
            a('v_max3_f32 v14, v%d, v%d, v12' % (x0, x1))
            for sw in ('v_permlane16_swap_b32', 'v_permlane32_swap_b32'):
                a('v_mov_b32 v15, v14'); a('%s v14, v15' % sw); a('v_max_f32 v14, v14, v15')
            a('v_sub_f32 v15, v12, v14')
            for x in X: a('v_sub_f32 v%d, v%d, v14' % (x, x))
            a('v_mul_f32 v15, 0x%x, v15' % LOG2E)
            for x in X: a('v_mul_f32 v%d, 0x%x, v%d' % (x, LOG2E, x))
            a('v_mov_b32 v12, v14')
            a('v_exp_f32 v14, v15')
            for x in X: a('v_exp_f32 v%d, v%d' % (x, x))
            for k in range(4): a('v_pk_mul_f32 v[%d:%d], v[%d:%d], v[14:15] op_sel_hi:[1,0]' % (16 + 2 * k, 17 + 2 * k, 16 + 2 * k, 17 + 2 * k))
            a('v_fma_f32 v13, v13, v14, v%d' % x0); a('v_add_f32 v13, v13, v%d' % x1)
            for x in X:
                a('v_cvt_pk_bf16_f32 v%d, 0, v%d' % (x + 1, x)); a('v_cvt_pk_bf16_f32 v%d, v%d, 0' % (x, x))
            for x, v in zip(X, V):
                for k in range(4):
                    a('v_dot2c_f32_bf16 v%d, v%d, v%d' % (16 + 2 * k, x, v + k))
                    a('v_dot2c_f32_bf16 v%d, v%d, v%d' % (17 + 2 * k, x + 1, v + k))
        def dyn_loop(DA_):
            DB_ = [sreg(free.pop(0)) for _ in range(2 * U)]
            Q = sreg(free.pop(0))
            a('v_and_b32 v14, 15, v1'); a('v_lshlrev_b32 v14, 4, v14')
            a('ds_read_b128 v[%d:%d], v14 offset:%d' % (Q, Q + 3, L_QS))
            a('s_waitcnt lgkmcnt(0)')
            lp = L('dyn'); dn = L('dynd')
            a.label(lp)
            for cur, nxt, tc, tn in ((DA_, DB_, 70, 71), (DB_, DA_, 71, 70)):
                sk = L('dyns')
                a('s_cmp_ge_u32 s%d, s69' % tc)
                a.branch('s_cbranch_scc1 ' + dn)
                a('s_waitcnt vmcnt(0)')
                a('v_readfirstlane_b32 s%d, v0' % tn)
                a('s_cmp_ge_u32 s%d, s69' % tn)
                a.branch('s_cbranch_scc1 ' + sk)
                unit_loads(nxt, tn, False)
                claim(False, tn)
                a.label(sk)
                unit_proc(cur, Q, tc)
            a.branch('s_branch ' + lp)
            a.label(dn)
            a('s_waitcnt vmcnt(1)')
            for r in DA_ + DB_ + [Q]: free.append((r - 24) // 4)
        def pv(j):
            vm.wait_tag(('V', j))
            Rg = sreg(vslot[j]); b = j >> 4; i = j & 15
            for k in range(4):
                a('v_dot2c_f32_bf16_dpp v%d, v%d, v%d row_newbcast:%d row_mask:0xf bank_mask:0xf' % (16 + 2 * k, S[b], Rg + k, i))
                a('v_dot2c_f32_bf16_dpp v%d, v%d, v%d row_newbcast:%d row_mask:0xf bank_mask:0xf' % (17 + 2 * k, PH[b], Rg + k, i))
            free.append(vslot[j])
        pvn = [0]
        def opportunistic_pv(maxn=99):
            n = 0
            while pvn[0] < R and ('V', pvn[0]) in vm.q[:vm.done] and n < maxn:
                pv(pvn[0]); pvn[0] += 1; n += 1
        def need_slot():
            while not free:
                pv(pvn[0]); pvn[0] += 1
        for j in range(nv, R):
            if P['Nend'] and not ffn and j >= R - P['endk']: NN[0] = P['Nend']
            need_slot()
            if not ffn and j == R - P['clead']: claim(True)
            ld_kv('V', j)
            opportunistic_pv(2)
        if not ffn:
            sk = L('tg')
            a('s_cmp_lg_u32 s3, 0')
            a.branch('s_cbranch_scc1 ' + sk)
            a('ds_write_b32 v10, v11 offset:%d' % L_TRIG)
            a.label(sk)
        def combine():
            stamp(5)
            for sw in ('v_permlane16_swap_b32', 'v_permlane32_swap_b32'):
                a('v_mov_b32 v15, v13'); a('%s v13, v15' % sw); a('v_add_f32 v13, v13, v15')
            red8_g([16 + k for k in range(8)])
            a('s_lshl_b32 s13, s3, 3'); a('v_mov_b32 v14, s13')
            a('ds_write_b64 v3, v[16:17] offset:%d' % L_OPART)
            a('s_mov_b64 exec, 1')
            a('ds_write_b64 v14, v[12:13] offset:%d' % L_FS)
            a('ds_add_rtn_u32 v12, v10, v11 offset:%d' % L_OCNT)
            a('s_mov_b32 exec_lo, -1')
            a('v_and_b32 v14, 7, v1'); a('v_lshlrev_b32 v14, 3, v14')
            a('s_waitcnt lgkmcnt(0)')
            a('v_readfirstlane_b32 s12, v12')
            dn = L('oxd')
            if P['dryC']:
                a('s_add_u32 s13, s12, 1'); a('s_and_b32 s13, s13, 6'); a('s_cmp_lg_u32 s13, 0')
            else: a('s_cmp_lg_u32 s12, 7')
            a.branch('s_cbranch_scc1 ' + dn)
            fr = [sreg(s) for s in free]
            assert len(fr) >= 8
            a('ds_read_b64 v[12:13], v14 offset:%d' % L_FS)
            for w in range(8): a('ds_read_b128 v[%d:%d], v4 offset:%d' % (fr[w], fr[w] + 3, L_OPART + 512 * w))
            a('s_waitcnt lgkmcnt(8)')
            a('v_max_f32_dpp v14, v12, v12 quad_perm:[1,0,3,2] row_mask:0xf bank_mask:0xf')
            a('v_max_f32_dpp v14, v14, v14 quad_perm:[2,3,0,1] row_mask:0xf bank_mask:0xf')
            a('v_max_f32_dpp v14, v14, v14 row_half_mirror row_mask:0xf bank_mask:0xf')
            a('v_sub_f32 v12, v12, v14'); a('v_mul_f32 v12, 0x%x, v12' % LOG2E); a('v_exp_f32 v12, v12')
            a('s_lshl_b32 s13, s8, 4'); a('s_add_u32 s13, s13, 0x%x' % W_OM)
            a('v_mul_f32 v15, v13, v12')
            a('v_min_u32 v14, -2, v14')
            a('v_add_f32_dpp v15, v15, v15 quad_perm:[1,0,3,2] row_mask:0xf bank_mask:0xf')
            a('v_add_f32_dpp v15, v15, v15 quad_perm:[2,3,0,1] row_mask:0xf bank_mask:0xf')
            a('v_add_f32_dpp v15, v15, v15 row_half_mirror row_mask:0xf bank_mask:0xf')
            for w in range(8):
                if w % 2 == 0: a('s_waitcnt lgkmcnt(%d)' % (6 - w))
                for c in range(4):
                    a('%s v%d, v12, v%d row_newbcast:%d row_mask:0xf bank_mask:0xf' % ('v_mul_f32_dpp' if w == 0 else 'v_fmac_f32_dpp', 16 + c, fr[w] + c, w))
            for k in range(4): a('v_min_u32 v%d, -2, v%d' % (16 + k, 16 + k))
            a('v_min_u32 v15, -2, v15')
            if P['dryC']:
                a('s_cmp_lg_u32 s12, 7')
                a.branch('s_cbranch_scc1 ' + dn)
            a('buffer_store_dwordx4 v[16:19], v4, s[48:51], s15 offen sc1')
            a('s_mov_b64 exec, 1')
            a('buffer_store_dwordx2 v[14:15], v10, s[48:51], s13 offen sc1')
            if not ffn: stamp(6)
            a.label(dn)
            a('s_mov_b64 exec, -1')
        done = [False]
        def progress():
            opportunistic_pv(2)
            if pvn[0] == R: done[0] = True
        if ffn:
            a('s_lshl_b32 s14, s9, 3'); a('s_add_u32 s14, s14, s3'); a('s_mul_i32 s14, s14, 9216')
            srd_off(60, 32, 33, 14, 4608 * 1152)
            while len(G) < 18:
                need_slot()
                ld_g(len(G), progress)
            while pvn[0] < R:
                pv(pvn[0]); pvn[0] += 1
            done[0] = True
            a('v_lshrrev_b32 v14, 5, v1'); a('v_mul_u32_u24 v14, 4608, v14'); a('v_and_b32 v6, 31, v1')
            a('v_lshl_add_u32 v15, v6, 2, v14'); a('v_add_u32 v15, 1024, v15'); a('v_lshl_add_u32 v14, v6, 4, v14')
            assert done[0]
            DA = []; DB = []
            DC = sreg(free.pop(0))
            for r in range(4):
                if r == 4 - (P['cleadF'] + 2) // 3: claim(True)
                for lst, off in ((DA, 0), (DB, 512)):
                    s = sreg(free.pop(0)); lst.append(s)
                    vm.throttle(P['fN'])
                    vm.issue('d', 'buffer_load_dwordx4 v[%d:%d], v14, s[60:63], 0 offen offset:%d%s' % (s, s + 3, r * 1152 + off, WNT))
                vm.issue('d', 'buffer_load_dword v%d, v15, s[60:63], 0 offen offset:%d%s' % (DC + r, r * 1152, WNT))
            if P['cleadF'] == 0:
                vm.throttle(P['cF']); claim(True)
            DA_ = dyn_start()
            dyn_loop(DA_)
            combine()
        else:
            while len(free) < 2 * U:
                pv(pvn[0]); pvn[0] += 1
            DA_ = dyn_start()
            while pvn[0] < R:
                pv(pvn[0]); pvn[0] += 1
            dyn_loop(DA_)
            combine()
            a('s_waitcnt vmcnt(0)')
        fr = [sreg(s) for s in free]
        assert len(fr) >= 9
        if not ffn or P['abl'] or P['so']:
            endwave(7); return
        a('v_lshrrev_b32 v3, 4, v1'); a('v_mul_u32_u24 v3, 18, v3'); a('s_mul_i32 s12, s79, 72'); a('v_add_u32 v3, s12, v3')
        a('v_and_b32 v7, 1, v1'); a('v_add3_u32 v7, v7, v3, 16'); a('v_and_b32 v12, 15, v1'); a('v_add_u32 v3, v3, v12')
        a('v_lshrrev_b32 v12, 1, v3'); a('v_lshlrev_b32 v12, 4, v12'); a('v_lshrrev_b32 v13, 1, v7'); a('v_lshlrev_b32 v13, 4, v13')
        a('s_mov_b32 s52, 0x%x' % W_MOD); a('s_mov_b32 s53, 0x%x' % (W_MOD + 4096)); a('s_mov_b32 s54, 0x%x' % (W_MOD + 8192)); a('s_mov_b32 s55, 0x%x' % (W_RDYB + 72 * 16))
        ld4 = lambda d, vo, so: 'buffer_load_dwordx4 v[%d:%d], v%d, s[48:51], s%d offen sc1' % (d, d + 3, vo, so)
        poll2([ld4(fr[0], 12, 53), ld4(fr[1], 12, 54), ld4(fr[2], 13, 53), ld4(fr[3], 13, 54)], tagcheck(fr[:4]), 'sbcb', sleep=4)
        for k in range(4): a('v_cndmask_b32 v%d, v%d, v%d, s[74:75]' % (fr[k], fr[k], fr[k] + 1))
        SBa, CBa, SBb, CBb = fr[7], fr[7] + 2, fr[8], fr[8] + 2
        for src, dst in ((fr[0], SBa), (fr[1], CBa), (fr[2], SBb), (fr[3], CBb)):
            a('v_lshlrev_b32 v%d, 16, v%d' % (dst, src)); a('v_and_b32 v%d, s78, v%d' % (dst + 1, src))
        a('v_lshlrev_b32 v3, 3, v3'); a('v_lshlrev_b32 v9, 3, v7')
        sum_publish(8, L_DPART, W_DS, DSR, 9, 3)
        a('v_mov_b32 v7, v9')
        a('v_lshlrev_b32 v8, 4, v1'); a('v_lshlrev_b32 v9, 2, v1')
        a('v_and_b32 v12, 15, v1'); a('v_lshrrev_b32 v13, 4, v1'); a('v_lshl_add_u32 v12, v12, 2, v13'); a('v_lshlrev_b32 v12, 2, v12')
        a('s_lshl_b32 s12, s3, 8'); a('v_add_u32 v12, s12, v12')
        a('v_lshrrev_b32 v4, 5, v1'); a('v_and_b32 v13, 3, v1'); a('v_lshl_add_u32 v13, v4, 2, v13'); a('v_lshlrev_b32 v13, 2, v13')
        a('s_lshl_b32 s12, s3, 5'); a('v_add_u32 v13, s12, v13')
        a('v_and_b32 v14, 31, v1'); a('v_lshl_add_u32 v4, v14, 1, v4'); a('s_mul_i32 s12, s3, 2304')
        a('v_lshlrev_b32 v14, 4, v4'); a('v_add_u32 v14, s12, v14'); a('v_lshlrev_b32 v15, 2, v4'); a('v_add_u32 v15, s12, v15')
        spare = 0
        gp = []
        for n_ in range(18):
            lo, hi, spare = pairperm([G[n_], G[n_] + 1], [G[n_] + 2, G[n_] + 3], spare)
            gp.append((lo, hi))
        dp = []
        for rp in range(2):
            A = [DA[2 * rp] + k for k in range(4)] + [DB[2 * rp] + k for k in range(4)] + [DC + 2 * rp]
            B = [DA[2 * rp + 1] + k for k in range(4)] + [DB[2 * rp + 1] + k for k in range(4)] + [DC + 2 * rp + 1]
            lo, hi, spare = pairperm(A, B, spare)
            dp.append((lo, hi))
        def bar_skip(nm):
            if P['dryF']:
                sk = L(nm)
                a('s_cmp_eq_u32 s70, 0')
                a.branch('s_cbranch_scc1 ' + sk)
                a('s_barrier')
                a.label(sk)
            else: a('s_barrier')
        if P['dryF']:
            a('s_mov_b32 s70, 0')
            a.label('L_fpass')
        for k in range(4): a('v_mov_b32 v%d, 0' % (16 + k))
        stamp(6)
        bar_skip('bx')
        stamp(7)
        a('ds_read_b128 v[%d:%d], v8 offset:%d' % (fr[0], fr[0] + 3, L_X2))
        a('ds_read_b128 v[%d:%d], v8 offset:%d' % (fr[1], fr[1] + 3, L_X2 + 1024))
        a('ds_read_b32 v20, v9 offset:%d' % (L_X2 + 2048))
        a('ds_read_b64 v[%d:%d], v3 offset:%d' % (fr[2], fr[2] + 1, L_X2))
        a('ds_read_b64 v[%d:%d], v7 offset:%d' % (fr[2] + 2, fr[2] + 3, L_X2))
        a('s_waitcnt lgkmcnt(2)')
        stamp(8)
        ln_stats([fr[0] + k for k in range(4)] + [fr[1] + k for k in range(4)] + [20], fr[3], fr[3] + 1, fr[3] + 2, fr[3] + 3)
        a('s_waitcnt lgkmcnt(0)')
        ln_apply([(fr[2], fr[2] + 1, CBa, CBa + 1, SBa, SBa + 1, 20), (fr[2] + 2, fr[2] + 3, CBb, CBb + 1, SBb, SBb + 1, 21)], fr[3], fr[3] + 1, 0)
        if P['fdiag']: stamp(1)
        for n_ in range(18):
            lo, hi = gp[n_]
            for k in range(2):
                a('v_dot2c_f32_bf16_dpp v%d, v%d, v%d row_newbcast:%d row_mask:0xf bank_mask:0xf' % (16 + 2 * k, 20 + (n_ >> 4), lo[k], n_ & 15))
                a('v_dot2c_f32_bf16_dpp v%d, v%d, v%d row_newbcast:%d row_mask:0xf bank_mask:0xf' % (17 + 2 * k, 20 + (n_ >> 4), hi[k], n_ & 15))
        a('v_permlane32_swap_b32 v16, v18'); a('v_permlane32_swap_b32 v17, v19')
        a('v_add_f32 v16, v16, v18'); a('v_add_f32 v17, v17, v19')
        a('v_permlane16_swap_b32 v16, v17')
        a('v_add_f32 v16, v16, v17')
        a('ds_write_b32 v12, v16 offset:%d' % L_GU)
        Y = [fr[k >> 2] + (k & 3) for k in range(18)]
        for y in Y: a('v_mov_b32 v%d, 0' % y)
        a('s_waitcnt lgkmcnt(0)')
        if P['fdiag']: stamp(2)
        bar_skip('b4')
        if P['fdiag']: stamp(3)
        for q in range(4):
            a('ds_read2st64_b32 v[%d:%d], v13 offset0:%d offset1:%d' % (16 + 2 * q, 17 + 2 * q, L_GU // 256 + 2 * q, L_GU // 256 + 2 * q + 1))
        a('s_waitcnt lgkmcnt(0)')
        a('v_pk_add_f32 v[16:17], v[16:17], v[18:19]'); a('v_pk_add_f32 v[20:21], v[20:21], v[22:23]')
        a('v_pk_add_f32 v[16:17], v[16:17], v[20:21]')
        rnd2(16, 17, 18)
        silu([16], [18])
        rnd1(16)
        a('v_mul_f32 v16, v16, v17')
        a('v_mov_b32_dpp v17, v16 quad_perm:[1,1,3,3] row_mask:0xf bank_mask:0xf')
        a('v_cvt_pk_bf16_f32 v16, v16, v17')
        for rp in range(2):
            lo, hi = dp[rp]; q = 2 * rp
            for k in range(9):
                a('v_dot2c_f32_bf16_dpp v%d, v16, v%d quad_perm:[%d,%d,%d,%d] row_mask:0xf bank_mask:0xf' % (Y[2 * k], lo[k], q, q, q, q))
                a('v_dot2c_f32_bf16_dpp v%d, v16, v%d quad_perm:[%d,%d,%d,%d] row_mask:0xf bank_mask:0xf' % (Y[2 * k + 1], hi[k], q, q, q, q))
        half_reduce_write(Y, 14, 15, L_DPART)
        a('s_waitcnt lgkmcnt(0)')
        if P['fdiag']: stamp(4)
        if P['dryF']:
            a('s_cmp_eq_u32 s70, 0'); a('s_mov_b32 s70, 1')
            a.branch('s_cbranch_scc1 L_fpass')
        a('s_barrier')
        if P['fdiag']: stamp(5)
        a('s_cmp_ge_u32 s3, 3')
        a.branch('s_cbranch_scc1 L_ffn_end')
        sum_publish2(8, L_DPART)
        a.label('L_ffn_end')
        endwave(9)
    attention(max(P['RW'], P['RL'], P['RU'], P['RN']), False)
    a.label('L_attF')
    attention(P['RF'], True)

    a.label('L_helper')
    a('s_sub_u32 s11, s3, 8')
    if P['prio']: a('s_setprio %d' % P['prio'])
    a('s_mul_i32 s9, s4, 9'); a('s_add_u32 s9, s9, s5'); a('s_mov_b32 s10, 1'); a('s_mov_b32 s47, s9')
    a('s_cmp_lt_u32 s5, 9')
    a.branch('s_cbranch_scc1 L_role_done')
    a('s_sub_u32 s9, s5, 9'); a('s_mov_b32 s10, 3'); a('s_lshl_b32 s47, s9, 3'); a('s_add_u32 s47, s47, s4'); a('s_add_u32 s47, s47, 72')
    a('s_cmp_lt_u32 s5, 18')
    a.branch('s_cbranch_scc1 L_role_done')
    a('s_cmp_lt_u32 s5, 23'); a('s_cselect_b32 s12, 18, 23'); a('s_cselect_b32 s10, 2, 4')
    a('s_sub_u32 s9, s5, s12'); a('s_lshl_b32 s9, s9, 3'); a('s_add_u32 s9, s9, s4')
    a('s_cmp_lt_u32 s9, 36'); a('s_cselect_b32 s10, s10, 0')
    a.label('L_role_done')
    a('s_waitcnt lgkmcnt(0)')
    if P['b0e']: a('s_barrier')
    def B0():
        if not P['b0e']: a('s_barrier')
    a('s_load_dwordx2 s[44:45], s[42:43], 0')
    srd(48, 42, 43, W_SIZE)
    if P['so']:
        a('ds_write_b32 v10, v11 offset:%d' % L_QFLAG); a('s_waitcnt lgkmcnt(0)'); B0(); a('s_endpgm')
    a('s_cmp_eq_u32 s11, 0')
    a.branch('s_cbranch_scc1 L_ctrl')
    if P['abl'] == 1:
        B0(); endwave(1)
    a('s_cmp_eq_u32 s10, 2')
    a.branch('s_cbranch_scc1 L_mod_leis')
    a('s_cmp_lg_u32 s10, 4')
    a.branch('s_cbranch_scc1 L_h23')
    a('s_lshr_b32 s46, s9, 1'); a('s_and_b32 s79, s9, 1'); a('s_mov_b32 s70, 1'); a('s_mov_b32 s71, 0')
    a.branch('s_branch L_mod_go')
    a.label('L_mod_leis')
    a('s_add_u32 s46, s9, 18'); a('s_mov_b32 s79, 0'); a('s_mov_b32 s70, 2'); a('s_mov_b32 s71, 1')
    B0()
    if P['abl'] in (2, 3): endwave(1)
    a('s_setprio %d' % P['bprio'])
    ldsflag_wait(L_QFLAG, 10, 12, 8)
    a.label('L_mod_go')
    a('s_mul_i32 s13, s79, 288'); a('s_sub_u32 s12, s11, 1'); a('s_mul_i32 s12, s12, 96'); a('s_add_u32 s13, s13, s12')
    a('s_lshl_b32 s12, s46, 7'); a('s_mul_i32 s15, s13, 6912'); a('s_add_u32 s12, s12, s15')
    srd_off(52, 36, 37, 12, 576 * 6912)
    a('s_lshl_b32 s12, s13, 1')
    srd_off(56, 34, 35, 12, 1152)
    a('v_lshrrev_b32 v2, 3, v1'); a('v_and_b32 v3, 7, v1')
    a('v_mul_u32_u24 v4, 24, v2')
    a('v_mul_u32_u24 v2, %d, v2' % (12 * 6912)); a('v_lshl_add_u32 v2, v3, 4, v2')
    if P['mod256']:
        a('s_lshr_b32 s12, s9, 2'); a('s_lshl_b32 s12, s12, 8'); a('s_and_b32 s13, s9, 3'); a('s_mul_i32 s13, s13, 144'); a('s_sub_u32 s15, s11, 1'); a('s_mul_i32 s15, s15, 48')
        a('s_add_u32 s13, s13, s15'); a('s_mul_i32 s13, s13, 6912'); a('s_add_u32 s12, s12, s13')
        srd_off(52, 36, 37, 12, 576 * 6912)
        a('v_lshrrev_b32 v2, 4, v1'); a('v_mul_u32_u24 v2, %d, v2' % (12 * 6912)); a('v_and_b32 v5, 15, v1'); a('v_lshl_add_u32 v2, v5, 4, v2')
    for k in range(8): a('v_mov_b32 v%d, 0' % (16 + k))
    a.label('L_mod_loop')
    vm = VM(a)
    vm.issue('c', 'buffer_load_dwordx4 v[24:27], v4, s[56:59], 0 offen')
    vm.issue('c', 'buffer_load_dwordx2 v[28:29], v4, s[56:59], 0 offen offset:16')
    for t in range(12):
        a('s_mov_b32 s15, %d' % (t * 6912))
        vm.issue('w', 'buffer_load_dwordx4 v[%d:%d], v2, s[52:55], s15 offen%s' % (96 + 4 * t, 99 + 4 * t, WNT))
    a('s_cmp_lg_u32 s71, 0')
    a.branch('s_cbranch_scc1 L_mod_nb')
    B0()
    a.label('L_mod_nb')
    vm.wait_tag('c')
    C = list(range(40, 52)); TT = list(range(58, 70))
    for k in range(6):
        a('v_lshlrev_b32 v%d, 16, v%d' % (C[2 * k], 24 + k)); a('v_and_b32 v%d, s78, v%d' % (C[2 * k + 1], 24 + k))
    silu(C, TT)
    for k in range(6): a('v_cvt_pk_bf16_f32 v%d, v%d, v%d' % (24 + k, C[2 * k], C[2 * k + 1]))
    stamp(1)
    spare = 33
    for tp in range(6):
        vm.wait_n(2 + 2 * tp + 2)
        A = [96 + 8 * tp + k for k in range(4)]; B = [100 + 8 * tp + k for k in range(4)]
        lo, hi, spare = pairperm(A, B, spare)
        for k in range(4):
            a('v_dot2c_f32_bf16 v%d, v%d, v%d' % (16 + 2 * k, 24 + tp, lo[k]))
            a('v_dot2c_f32_bf16 v%d, v%d, v%d' % (17 + 2 * k, 24 + tp, hi[k]))
    a('v_add_u32 v2, %d, v2' % (288 * 6912)); a('v_add_u32 v4, 576, v4')
    a('s_sub_u32 s70, s70, 1'); a('s_cmp_lg_u32 s70, 0')
    a.branch('s_cbranch_scc1 L_mod_loop')
    stamp(2)
    red8_g([16 + k for k in range(8)])
    for r in (16, 17): a('v_add_f32_dpp v%d, v%d, v%d row_ror:8 row_mask:0xf bank_mask:0xf' % (r, r, r))
    a('v_lshlrev_b32 v5, 3, v1'); a('s_lshl_b32 s12, s11, 9'); a('v_add_u32 v6, s12, v5')
    a('ds_write_b64 v6, v[16:17] offset:%d' % (L_MPART - 512))
    a('s_mov_b64 exec, 1')
    a('ds_add_rtn_u32 v12, v10, v11 offset:%d' % L_MCNT)
    a('s_mov_b64 exec, -1')
    tag_ready()
    a('v_readfirstlane_b32 s12, v12')
    a('s_cmp_lg_u32 s12, 2')
    a.branch('s_cbranch_scc1 L_mod_done')
    a('ds_read2st64_b64 v[16:19], v5 offset0:%d offset1:%d' % (L_MPART // 512, L_MPART // 512 + 1))
    a('ds_read_b64 v[20:21], v5 offset:%d' % (L_MPART + 1024))
    a('v_lshrrev_b32 v4, 4, v1')
    a('s_waitcnt lgkmcnt(0)')
    a('v_pk_add_f32 v[16:17], v[16:17], v[18:19]'); a('v_pk_add_f32 v[16:17], v[16:17], v[20:21]')
    a('v_mov_b32 v18, s44'); a('v_mov_b32 v19, s45')
    a('s_cmp_lg_u32 s71, 0')
    a.branch('s_cbranch_scc1 L_mod_pub2')
    a('s_cmp_ge_u32 s46, 9'); a('s_cselect_b32 s12, 2, 0'); a('s_cselect_b32 s13, 9, 0'); a('s_add_u32 s12, s12, s79'); a('s_mul_i32 s12, s12, 4608')
    a('s_sub_u32 s13, s46, s13'); a('s_lshl_b32 s13, s13, 9'); a('s_add_u32 s12, s12, s13'); a('s_add_u32 s12, s12, 0x%x' % W_MODP)
    a('v_lshl_add_u32 v4, v3, 2, v4'); a('v_lshlrev_b32 v4, 4, v4')
    a('s_mov_b32 exec_lo, 0x00ff00ff'); a('s_mov_b32 exec_hi, 0x00ff00ff')
    a('buffer_store_dwordx4 v[16:19], v4, s[48:51], s12 offen sc1')
    a('s_mov_b64 exec, -1')
    stamp(3)
    a.branch('s_branch L_mod_done')
    a.label('L_mod_pub2')
    a('s_mul_i32 s12, s9, 57'); a('s_lshr_b32 s12, s12, 9')
    a('s_mul_i32 s13, s12, 9'); a('s_sub_u32 s13, s9, s13')
    rnd2(16, 17, 20)
    a('v_add_f32 v20, 1.0, v16'); a('v_add_f32 v21, 1.0, v17')
    a('s_cmp_eq_u32 s12, 2'); a('s_cselect_b64 s[100:101], -1, 0')
    a('v_cndmask_b32 v16, v16, v20, s[100:101]'); a('v_cndmask_b32 v17, v17, v21, s[100:101]')
    a('v_cvt_pk_bf16_f32 v16, v16, v17')
    a('v_mov_b32 v17, v16')
    a('v_permlane16_swap_b32 v16, v17')
    a('s_lshl_b32 s12, s12, 12'); a('s_lshl_b32 s13, s13, 8'); a('s_add_u32 s12, s12, s13'); a('s_add_u32 s12, s12, 0x%x' % W_MOD)
    a('v_lshrrev_b32 v4, 5, v1'); a('v_lshl_add_u32 v4, v3, 1, v4'); a('v_lshlrev_b32 v4, 4, v4')
    a('s_mov_b32 exec_lo, 0xff'); a('s_mov_b32 exec_hi, 0xff')
    a('buffer_store_dwordx4 v[16:19], v4, s[48:51], s12 offen sc1')
    stamp(3)
    a.label('L_mod_done')
    endwave(4)
    a.label('L_h23')
    B0()
    tag_ready()
    a('s_cmp_eq_u32 s10, 3')
    a.branch('s_cbranch_scc1 L_wo_w')
    a('s_cmp_eq_u32 s10, 1')
    a.branch('s_cbranch_scc1 L_ysg')
    endwave(1)

    a.label('L_ctrl')
    vm = VM(a)
    srd(60, 16, 17, 1152)
    a('v_min_u32 v4, 35, v1')
    a('v_lshlrev_b32 v5, 3, v1'); a('v_lshlrev_b32 v6, 1, v1'); a('v_lshlrev_b32 v7, 2, v4'); a('s_mul_i32 s15, s7, 144')
    vm.issue('x', 'buffer_load_dwordx2 v[34:35], v5, s[60:63], 0 offen')
    vm.issue('x', 'buffer_load_dwordx2 v[36:37], v5, s[60:63], 0 offen offset:512')
    vm.issue('x', 'buffer_load_ushort v38, v6, s[60:63], 0 offen offset:1024')
    vm.issue('x', 'buffer_load_dword v39, v7, s[60:63], s15 offen')
    a('s_mul_i32 s12, s7, %d' % (72 * 8192)); a('s_lshl_b32 s13, s6, 8'); a('s_add_u32 s12, s12, s13')
    srd_off(52, 22, 23, 12, 576 * 8192)
    a('v_lshrrev_b32 v2, 4, v1'); a('v_lshlrev_b32 v9, 2, v2'); a('v_lshlrev_b32 v2, 14, v2'); a('v_and_b32 v3, 15, v1'); a('v_lshl_add_u32 v2, v3, 4, v2')
    if P['nowq']: a('s_mov_b32 s54, 0')
    for t in range(18):
        a('s_mov_b32 s15, %d' % ((t >> 1) * 65536 + (t & 1) * 8192))
        vm.issue('w', 'buffer_load_dwordx4 v[%d:%d], v2, s[52:55], s15 offen%s' % (96 + 4 * t, 99 + 4 * t, WNT))
    B0()
    if P['noclr']: a('s_mov_b32 s50, 0')
    for k in range(4): a('v_mov_b32 v%d, -1' % (24 + k))
    a('v_lshlrev_b32 v5, 4, v1')
    a('s_lshl_b32 s12, s8, 9'); a('s_add_u32 s12, s12, 0x%x' % W_OX)
    a('v_lshrrev_b32 v6, 5, v1'); a('v_mul_u32_u24 v6, %d, v6' % (W_OX - W_QP - 512)); a('v_add_u32 v6, v6, v5')
    a('s_sub_u32 s12, s12, %d' % (W_OX - W_QP))
    a('buffer_store_dwordx4 v[24:27], v6, s[48:51], s12 offen sc1')
    a('s_lshl_b32 s12, s8, 4'); a('s_add_u32 s12, s12, 0x%x' % W_OM)
    a('s_mov_b64 exec, 1')
    a('buffer_store_dwordx4 v[24:27], v10, s[48:51], s12 offen sc1')
    a('s_cmp_lg_u32 s7, 0')
    a.branch('s_cbranch_scc1 L_clr1')
    a('s_lshl_b32 s12, s6, 8'); a('s_add_u32 s12, s12, 0x%x' % W_CNT)
    a('buffer_store_dword v10, v10, s[48:51], s12 offen sc1')
    a.label('L_clr1')
    a('s_mov_b64 exec, -1')
    a('s_cmp_lg_u32 s10, 1')
    a.branch('s_cbranch_scc1 L_clr2')
    a('s_mov_b32 exec_hi, 0xffff')
    a('v_lshrrev_b32 v6, 2, v1'); a('v_mul_u32_u24 v6, %d, v6' % DSR); a('v_and_b32 v8, 3, v1'); a('v_lshl_add_u32 v6, v8, 4, v6')
    a('s_lshl_b32 s12, s9, 6'); a('s_add_u32 s12, s12, 0x%x' % W_DS)
    for j in range(3):
        a('buffer_store_dwordx4 v[24:27], v6, s[48:51], s12 offen sc1')
        if j < 2: a('s_add_u32 s12, s12, %d' % (12 * DSR))
    a.label('L_clr2')
    a('s_mov_b64 exec, -1')
    a('s_cmp_lg_u32 s10, 3')
    a.branch('s_cbranch_scc1 L_clr3')
    a('v_lshrrev_b32 v6, 4, v1'); a('v_mul_u32_u24 v6, %d, v6' % YSC); a('v_lshl_add_u32 v6, v3, 4, v6')
    a('s_mul_i32 s12, s4, 2304'); a('s_lshl_b32 s13, s9, 8'); a('s_add_u32 s12, s12, s13'); a('s_add_u32 s12, s12, 0x%x' % W_YS)
    a('buffer_store_dwordx4 v[24:27], v6, s[48:51], s12 offen sc1')
    a.label('L_clr3')
    a('s_waitcnt vmcnt(20)')
    XS = list(range(40, 49))
    for k in range(4):
        a('v_lshlrev_b32 v%d, 16, v%d' % (XS[2 * k], 34 + k)); a('v_and_b32 v%d, s78, v%d' % (XS[2 * k + 1], 34 + k))
    a('v_lshlrev_b32 v48, 16, v38')
    ln_stats(XS, 60, 61, 62, 63)
    a('v_lshlrev_b32 v56, 16, v39'); a('v_and_b32 v57, s78, v39')
    a('v_sub_f32 v56, v56, v60'); a('v_sub_f32 v57, v57, v60'); rnd2(56, 57, 58)
    a('v_mul_f32 v56, v56, v61'); a('v_mul_f32 v57, v57, v61'); rnd2(56, 57, 58)
    tag_ready()
    a('s_lshl_b32 s12, s8, 4'); a('s_add_u32 s12, s12, 0x%x' % W_RDYA); a('s_lshl_b32 s13, s47, 4'); a('s_add_u32 s13, s13, 0x%x' % W_RDYB)
    a('v_mov_b32 v8, s13'); a('v_writelane_b32 v8, s12, 0')
    a('v_mov_b32 v66, s44'); a('v_mov_b32 v67, s45')
    a('s_bitcmp1_b32 s10, 0'); a('s_cselect_b32 s12, 3, 1')
    a('v_lshlrev_b32 v5, 4, v4')
    a('s_mul_i32 s64, s7, 576'); a('s_add_u32 s64, s64, 0x%x' % W_MODP)
    for k in range(1, 4): a('s_add_u32 s%d, s%d, 4608' % (64 + k, 63 + k))
    a('v_and_b32 v6, 7, v1'); a('v_lshlrev_b32 v6, 4, v6'); a('s_lshl_b32 s68, s6, 7'); a('s_add_u32 s68, s68, 0x%x' % W_RDYA)
    a('s_waitcnt vmcnt(0)')
    stamp(1)
    a('s_mov_b32 exec_lo, s12'); a('s_mov_b32 exec_hi, 0')
    a('buffer_store_dwordx4 v[64:67], v8, s[48:51], 0 offen sc1')
    a('s_mov_b64 exec, -1')
    if P['noclr']: a('s_mov_b32 s50, 0x%x' % W_SIZE)
    if P['abl'] in (1, 2):
        a('ds_write_b32 v10, v11 offset:%d' % L_QFLAG); endwave(1)
    wq_pairs = []
    def wq_perms():
        spare = 68
        for tp in range(9):
            A = [96 + 8 * tp + k for k in range(4)]; B = [100 + 8 * tp + k for k in range(4)]
            lo, hi, spare = pairperm(A, B, spare)
            wq_pairs.append((lo, hi))
        for k in range(8): a('v_mov_b32 v%d, 0' % (16 + k))
    poll2(['buffer_load_dwordx4 v[%d:%d], v5, s[48:51], s%d offen sc1' % (24 + 8 * k, 27 + 8 * k, 64 + k) for k in range(4)] +
          ['buffer_load_dwordx4 v[28:31], v6, s[48:51], s68 offen sc1'],
          tagcheck([24, 32, 40, 48, 28]), 'h1', filler=wq_perms, sleep=P['h1sleep'])
    stamp(2)
    for base in (24, 40):
        a('v_pk_add_f32 v[%d:%d], v[%d:%d], v[%d:%d]' % (base, base + 1, base, base + 1, base + 8, base + 9))
    rnd2(40, 41, 28)
    rnd2(24, 25, 29)
    a('v_add_f32 v40, 1.0, v40'); a('v_add_f32 v41, 1.0, v41')
    rnd2(40, 41, 28)
    a('v_mul_f32 v56, v56, v40'); a('v_mul_f32 v57, v57, v41'); rnd2(56, 57, 28)
    a('v_add_f32 v56, v56, v24'); a('v_add_f32 v57, v57, v25')
    a('v_cvt_pk_bf16_f32 v56, v56, v57')
    a('ds_write_b32 v7, v56 offset:%d' % L_H1S)
    for jp in range(9): a('ds_read_b32 v%d, v9 offset:%d' % (40 + jp, L_H1S + 16 * jp))
    a('v_lshlrev_b32 v5, 4, v1'); a('v_lshlrev_b32 v6, 5, v3'); a('v_lshl_add_u32 v6, v9, 1, v6')
    a('s_lshl_b32 s15, s8, 9'); a('s_add_u32 s15, s15, 0x%x' % W_QP)
    a('s_waitcnt lgkmcnt(0)')
    for jp in range(9):
        lo, hi = wq_pairs[jp]
        for k in range(4):
            a('v_dot2c_f32_bf16 v%d, v%d, v%d' % (16 + 2 * k, 40 + jp, lo[k]))
            a('v_dot2c_f32_bf16 v%d, v%d, v%d' % (17 + 2 * k, 40 + jp, hi[k]))
    red8_g([16 + k for k in range(8)])
    a('v_min_u32 v16, -2, v16'); a('v_min_u32 v17, -2, v17')
    a('buffer_store_dwordx2 v[16:17], v6, s[48:51], s15 offen sc1')
    stamp(3)
    a('s_lshl_b32 s15, s6, 12'); a('s_add_u32 s15, s15, 0x%x' % W_QP)
    a('v_and_b32 v6, 31, v1'); a('v_lshlrev_b32 v6, 3, v6'); a('v_lshrrev_b32 v7, 5, v1'); a('v_lshl_add_u32 v6, v7, 2, v6')
    if P['qp0']: a('s_sleep %d' % P['qp0'])
    def oxcheck():
        tree_add4([24, 28, 32, 36])
        a('v_permlane32_swap_b32 v24, v26'); a('v_permlane32_swap_b32 v25, v27')
        a('v_add_f32 v24, v24, v26'); a('v_add_f32 v25, v25, v27')
        a('v_max_u32 v26, v24, v25')
        a('v_cvt_pk_bf16_f32 v28, v24, v25')
        a('v_cmp_eq_u32 vcc, -1, v26')
    poll2(['buffer_load_dwordx4 v[%d:%d], v5, s[48:51], s15 offen offset:%d sc1' % (24 + 4 * k, 27 + 4 * k, 1024 * k) for k in range(4)], oxcheck, 'qp', sleep=P['qpsleep'])
    a('ds_write_b32 v6, v28 offset:%d' % L_QS)
    a('ds_write_b32 v10, v11 offset:%d' % L_QFLAG)
    stamp(4)
    def wo_issue():
        vm = VM(a)
        a('s_setprio %d' % P['bprio'])
        a('s_lshl_b32 s46, s4, 2'); a('s_add_u32 s46, s46, s11')
        a('s_mul_i32 s12, s46, 147456'); a('s_lshl_b32 s13, s9, 7'); a('s_add_u32 s12, s12, s13')
        srd_off(52, 24, 25, 12, 4096 * 1152)
        a('v_bfe_u32 v2, v1, 4, 1'); a('v_mul_u32_u24 v2, %d, v2' % (64 * 1152)); a('v_lshrrev_b32 v3, 5, v1'); a('v_mul_u32_u24 v3, 2304, v3')
        a('v_add_u32 v2, v2, v3'); a('v_and_b32 v3, 15, v1'); a('v_lshl_add_u32 v2, v3, 3, v2')
        for n in range(16):
            a('s_mov_b32 s15, %d' % (4608 * n))
            for e in range(2):
                vm.throttle(P['wN'])
                vm.issue('w', 'buffer_load_dwordx2 v[%d:%d], v2, s[52:55], s15 offen offset:%d%s' % (96 + 4 * n + 2 * e, 97 + 4 * n + 2 * e, e * 1152, WNT))
    if P['abl'] == 3: endwave(1)
    a('s_cmp_eq_u32 s10, 3')
    a.branch('s_cbranch_scc1 L_wo')
    a('s_cmp_eq_u32 s10, 2')
    a.branch('s_cbranch_scc1 L_reducer')
    a('s_cmp_eq_u32 s10, 1')
    a.branch('s_cbranch_scc1 L_ysg')
    endwave(6)

    a.label('L_ysg')
    a('v_min_u32 v2, 35, v1'); a('s_mul_i32 s12, s11, 36'); a('v_add_u32 v2, s12, v2')
    a('v_lshlrev_b32 v3, 3, v2'); a('v_lshlrev_b32 v2, 4, v2')
    a('v_lshlrev_b32 v4, 4, v1'); a('v_add_u32 v5, 64, v1'); a('v_min_u32 v5, 71, v5'); a('v_lshlrev_b32 v5, 4, v5')
    srd(68, 16, 17, 1152)
    a('s_mov_b32 s52, 0x%x' % W_MOD); a('s_mov_b32 s55, 0x%x' % (W_RDYB + 72 * 16))
    ldscnt_wait(L_OCNT, 10, 12, 8, 4)
    poll2(['buffer_load_dwordx4 v[24:27], v2, s[48:51], s52 offen sc1', 'buffer_load_dwordx4 v[28:31], v4, s[48:51], s55 offen sc1',
           'buffer_load_dwordx4 v[32:35], v5, s[48:51], s55 offen sc1', 'buffer_load_dwordx2 v[36:37], v3, s[68:71], 0 offen'], tagcheck([24, 28, 32]), 'ysr0', sleep=4)
    for src, dst in ((24, 12), (25, 14), (36, 16), (37, 18)):
        a('v_lshlrev_b32 v%d, 16, v%d' % (dst, src)); a('v_and_b32 v%d, s78, v%d' % (dst + 1, src))
    a('s_and_b32 s12, s5, 3'); a('s_mul_i32 s52, s12, %d' % YSC); a('s_add_u32 s52, s52, 0x%x' % W_YS)
    for k in range(1, 4): a('s_add_u32 s%d, s%d, 4608' % (52 + k, 51 + k))
    a('s_mov_b32 exec_hi, 0xf')
    stamp(6)
    def ysissue(q):
        B = 24 + 32 * q
        for k in range(8): a('buffer_load_dwordx4 v[%d:%d], v2, s[48:51], s%d offen offset:%d sc1' % (B + 4 * k, B + 3 + 4 * k, 52 + (k >> 1), (k & 1) * 2304))
    def yscheck(q):
        B = 24 + 32 * q
        for step in (1, 2, 4):
            for k in range(0, 8, 2 * step):
                for hh in (0, 2):
                    x = B + 4 * k + hh; y = x + 4 * step; d = 20 + hh if step == 4 else x
                    a('v_pk_add_f32 v[%d:%d], v[%d:%d], v[%d:%d]' % (d, d + 1, x, x + 1, y, y + 1))
        a('v_max3_u32 v4, v20, v21, v22'); a('v_max_u32 v4, v4, v23')
        a('v_cmp_eq_u32 vcc, -1, v4')
    poll_rot(P['ysK'], ysissue, yscheck, 8, 'ys', P['yssleep'])
    stamp(7)
    rnd2(20, 21, 4); rnd2(22, 23, 5)
    a('v_pk_mul_f32 v[20:21], v[20:21], v[12:13]'); a('v_pk_mul_f32 v[22:23], v[22:23], v[14:15]')
    rnd2(20, 21, 4); rnd2(22, 23, 5)
    a('v_pk_add_f32 v[20:21], v[20:21], v[16:17]'); a('v_pk_add_f32 v[22:23], v[22:23], v[18:19]')
    rnd2(20, 21, 4); rnd2(22, 23, 5)
    a('ds_write_b128 v2, v[20:23] offset:%d' % L_X2)
    a('s_waitcnt lgkmcnt(0)')
    a('s_barrier')
    a('s_waitcnt vmcnt(0)')
    endwave(9)

    a.label('L_wo_w')
    if P['abl'] in (2, 3): endwave(1)
    a('s_setprio %d' % P['bprio'])
    ldsflag_wait(L_QFLAG, 10, 12, 8)
    a.label('L_wo')
    wo_issue()
    a('v_and_b32 v4, 7, v1'); a('v_lshlrev_b32 v4, 4, v4')
    a('s_lshl_b32 s15, s46, 7'); a('s_add_u32 s15, s15, 0x%x' % W_RDYA)
    poll2(['buffer_load_dwordx4 v[28:31], v4, s[48:51], s15 offen sc1'], tagcheck([28]), 'rdyo', sleep=P['mlsleep'])
    a('v_lshrrev_b32 v9, 5, v1'); a('v_lshlrev_b32 v9, 4, v9'); a('v_xor_b32 v9, v9, v4')
    a('s_lshl_b32 s65, s46, 7'); a('s_add_u32 s65, s65, 0x%x' % W_OM)
    stamp(5)
    spare = 160
    wp = []
    for n in range(16):
        lo, hi, spare = pairperm([96 + 4 * n, 97 + 4 * n], [98 + 4 * n, 99 + 4 * n], spare)
        wp.append((lo, hi))
    a('v_lshlrev_b32 v5, 4, v1')
    a('s_lshl_b32 s15, s46, 12'); a('s_add_u32 s15, s15, 0x%x' % W_OX)
    a('v_lshrrev_b32 v6, 4, v1'); a('v_mul_u32_u24 v8, %d, v6' % YSC); a('v_lshl_add_u32 v6, v3, 2, v6'); a('v_lshlrev_b32 v6, 2, v6')
    a('s_lshl_b32 s12, s11, 8'); a('v_add_u32 v6, s12, v6')
    a('v_lshlrev_b32 v7, 4, v3'); a('v_add_u32 v8, v8, v7')
    a('s_mul_i32 s64, s4, 2304'); a('s_lshl_b32 s13, s9, 8'); a('s_add_u32 s64, s64, s13'); a('s_add_u32 s64, s64, 0x%x' % W_YS)
    stamp(6)
    for k in range(4): a('v_mov_b32 v%d, 0' % (16 + k))
    if P['dryW']:
        a('s_mov_b32 s70, 0')
        a.branch('s_branch L_wo_dry')
        a.label('L_wpass')
        for k in range(4): a('v_mov_b32 v%d, 0' % (16 + k))
    ldscnt_wait(L_OCNT, 10, 12, 8, 2)
    def oxissue(q):
        B = 24 + 20 * q
        a('buffer_load_dwordx2 v[%d:%d], v9, s[48:51], s65 offen sc1' % (B + 16, B + 17))
        for k in range(4): a('buffer_load_dwordx4 v[%d:%d], v5, s[48:51], s15 offen offset:%d sc1' % (B + 4 * k, B + 3 + 4 * k, 1024 * k))
    def oxcheck(q):
        B = 24 + 20 * q; M = B + 16; Lr = B + 17
        DP = ('quad_perm:[1,0,3,2]', 'quad_perm:[2,3,0,1]', 'row_half_mirror')
        a('v_max_f32_dpp v92, v%d, v%d %s row_mask:0xf bank_mask:0xf' % (M, M, DP[0]))
        for d in DP[1:]: a('v_max_f32_dpp v92, v92, v92 %s row_mask:0xf bank_mask:0xf' % d)
        a('v_max_u32 v93, v%d, v%d' % (M, Lr))
        a('v_sub_f32 v%d, v%d, v92' % (M, M)); a('v_mul_f32 v%d, 0x%x, v%d' % (M, LOG2E, M)); a('v_exp_f32 v%d, v%d' % (M, M))
        a('v_cmp_eq_u32 s[12:13], -1, v93')
        a('v_mul_f32 v%d, v%d, v%d' % (Lr, Lr, M))
        for d in DP: a('v_add_f32_dpp v%d, v%d, v%d %s row_mask:0xf bank_mask:0xf' % (Lr, Lr, Lr, d))
        a('v_rcp_f32 v%d, v%d' % (Lr, Lr))
        a('v_mul_f32 v%d, v%d, v%d' % (M, M, Lr))
        for k in range(4): a('v_mov_b32_dpp v%d, v%d row_newbcast:%d row_mask:0xf bank_mask:0xf' % (84 + 2 * k, M, 2 * k))
        for hh in (0, 2): a('v_pk_mul_f32 v[%d:%d], v[%d:%d], v[84:85] op_sel_hi:[1,0]' % (B + hh, B + 1 + hh, B + hh, B + 1 + hh))
        for k in range(1, 4):
            for hh in (0, 2):
                a('v_pk_fma_f32 v[%d:%d], v[%d:%d], v[%d:%d], v[%d:%d] op_sel_hi:[1,0,1]' % (B + hh, B + 1 + hh, B + 4 * k + hh, B + 1 + 4 * k + hh, 84 + 2 * k, 85 + 2 * k, B + hh, B + 1 + hh))
        a('v_permlane32_swap_b32 v%d, v%d' % (B, B + 2)); a('v_permlane32_swap_b32 v%d, v%d' % (B + 1, B + 3))
        a('v_add_f32 v%d, v%d, v%d' % (B, B, B + 2)); a('v_add_f32 v%d, v%d, v%d' % (B + 1, B + 1, B + 3))
        a('v_max_u32 v93, v%d, v%d' % (B, B + 1))
        a('v_cvt_pk_bf16_f32 v94, v%d, v%d' % (B, B + 1))
        a('v_cmp_eq_u32 vcc, -1, v93')
        a('s_or_b64 vcc, vcc, s[12:13]')
    poll_rot(P['oxK'], oxissue, oxcheck, 5, 'ox', P['oxsleep'])
    a.label('L_wo_dry')
    stamp(7)
    for n in range(16):
        lo, hi = wp[n]
        for k in range(2):
            a('v_dot2c_f32_bf16_dpp v%d, v94, v%d row_newbcast:%d row_mask:0xf bank_mask:0xf' % (16 + 2 * k, lo[k], n))
            a('v_dot2c_f32_bf16_dpp v%d, v94, v%d row_newbcast:%d row_mask:0xf bank_mask:0xf' % (17 + 2 * k, hi[k], n))
    a('v_permlane32_swap_b32 v16, v18'); a('v_permlane32_swap_b32 v17, v19')
    a('v_add_f32 v16, v16, v18'); a('v_add_f32 v17, v17, v19')
    a('v_permlane16_swap_b32 v16, v17')
    a('v_add_f32 v16, v16, v17')
    a('ds_write_b32 v6, v16 offset:%d' % L_WPART)
    a('s_waitcnt lgkmcnt(0)')
    stamp(8)
    if P['dryW']:
        a('s_cmp_eq_u32 s70, 0')
        a.branch('s_cbranch_scc1 L_wo_nb')
    a('s_barrier')
    a('s_cmp_lg_u32 s11, 0')
    a.branch('s_cbranch_scc1 L_wo_end')
    a.label('L_wo_nb')
    assert P['oxK'] <= 2
    for w in range(4): a('ds_read_b128 v[%d:%d], v7 offset:%d' % (64 + 4 * w, 67 + 4 * w, L_WPART + 256 * w))
    a('s_waitcnt lgkmcnt(0)')
    tree_add4([64, 68, 72, 76])
    for k in range(4): a('v_min_u32 v%d, -2, v%d' % (64 + k, 64 + k))
    if P['dryW']:
        a('s_cmp_eq_u32 s70, 0'); a('s_mov_b32 s70, 1')
        a.branch('s_cbranch_scc1 L_wpass')
    a('buffer_store_dwordx4 v[64:67], v8, s[48:51], s64 offen sc1')
    a.label('L_wo_end')
    endwave(9)

    a.label('L_reducer')
    if P['abl'] == 4: endwave(1)
    a('s_setprio 0')
    a('v_lshlrev_b32 v5, 4, v1'); a('v_add_u32 v6, 128, v1'); a('v_min_u32 v6, 143, v6'); a('v_lshlrev_b32 v6, 4, v6')
    a('s_mov_b32 s15, 0x%x' % W_RDYB)
    a('v_and_b32 v7, 3, v1'); a('v_lshlrev_b32 v8, 4, v7')
    a('s_lshl_b32 s64, s9, 6'); a('s_add_u32 s65, s64, 0x%x' % (W_MOD + 3 * 4096)); a('s_add_u32 s64, s64, 0x%x' % W_MOD)
    ldsflag_wait(L_TRIG, 10, 12, 8)
    poll2(['buffer_load_dwordx4 v[%d:%d], v5, s[48:51], s15 offen offset:%d sc1' % (32 + 4 * k, 35 + 4 * k, 1024 * k) for k in range(2)] +
          ['buffer_load_dwordx4 v[44:47], v6, s[48:51], s15 offen sc1',
           'buffer_load_dwordx4 v[24:27], v8, s[48:51], s64 offen sc1', 'buffer_load_dwordx4 v[28:31], v8, s[48:51], s65 offen sc1'],
          tagcheck([24, 28, 32, 36, 44]), 'rdyr', sleep=8)
    a('v_bfe_u32 v12, v1, 3, 1'); a('v_bfe_u32 v13, v1, 2, 1')
    a('v_lshlrev_b32 v7, 2, v7'); a('v_lshl_add_u32 v7, v12, 1, v7'); a('v_add_u32 v7, v7, v13')
    a('v_lshlrev_b32 v64, 1, v7')
    srd(64, 16, 17, 1152)
    a('s_lshl_b32 s15, s9, 5')
    a('buffer_load_ushort v60, v64, s[64:67], s15 offen')
    a('v_cmp_eq_u32 s[68:69], 1, v12'); a('v_cmp_eq_u32 s[70:71], 1, v13')
    for src, dst in ((24, 61), (28, 62)):
        a('v_cndmask_b32 v14, v%d, v%d, s[68:69]' % (src, src + 1))
        a('v_lshlrev_b32 v15, 16, v14'); a('v_and_b32 v14, s78, v14')
        a('v_cndmask_b32 v%d, v15, v14, s[70:71]' % dst)
    a('s_waitcnt vmcnt(0)')
    a('v_lshlrev_b32 v60, 16, v60')
    srd(64, 38, 39, 1152)
    a('s_lshl_b32 s52, s9, 6'); a('s_add_u32 s52, s52, 0x%x' % W_YS)
    for k in range(1, 4): a('s_add_u32 s%d, s%d, 4608' % (52 + k, 51 + k))
    a('s_mul_i32 s56, s9, %d' % DSR); a('s_add_u32 s56, s56, 0x%x' % W_DS); a('s_add_u32 s57, s56, 4096')
    for q in range(3):
        for k in range(4): a('v_mov_b32 v%d, 0' % (112 + 20 * q + k))
    ldscnt_wait(L_OCNT, 10, 12, 8, 4)
    stamp(6)
    def yscheck():
        tree_add4([24 + 4 * k for k in range(8)])
        a('v_max3_u32 v28, v24, v25, v26'); a('v_max_u32 v28, v28, v27')
        a('v_cmp_eq_u32 vcc, -1, v28')
    poll2(['buffer_load_dwordx4 v[%d:%d], v8, s[48:51], s%d offen offset:%d sc1' % (24 + 4 * k, 27 + 4 * k, 52 + (k >> 1), (k & 1) * 2304) for k in range(8)], yscheck, 'ysr', sleep=P['rsleep'])
    stamp(7)
    a('v_cndmask_b32 v24, v24, v26, s[68:69]'); a('v_cndmask_b32 v25, v25, v27, s[68:69]')
    a('v_cndmask_b32 v16, v24, v25, s[70:71]')
    rnd1(16); a('v_mul_f32 v16, v16, v61'); rnd1(16); a('v_add_f32 v60, v60, v16'); rnd1(60)
    a('s_lshl_b32 s15, s9, 5')
    nl = 5
    def dsissue(q):
        B = 96 + 20 * q
        for k in range(nl):
            if k == 4: a('s_mov_b32 exec_hi, 0')
            a('buffer_load_dwordx4 v[%d:%d], v5, s[48:51], s%d offen offset:%d sc1' % (B + 4 * k, B + 3 + 4 * k, 56 + (k >> 2), (k & 3) * 1024))
        a('s_mov_b32 exec_hi, -1')
    def dscheck(q):
        B = 96 + 20 * q
        for hh in (0, 2): a('v_pk_add_f32 v[%d:%d], v[%d:%d], v[%d:%d]' % (16 + hh, 17 + hh, B + hh, B + 1 + hh, B + 4 + hh, B + 5 + hh))
        for hh in (0, 2): a('v_pk_add_f32 v[%d:%d], v[%d:%d], v[%d:%d]' % (20 + hh, 21 + hh, B + 8 + hh, B + 9 + hh, B + 12 + hh, B + 13 + hh))
        for hh in (0, 2): a('v_pk_add_f32 v[%d:%d], v[%d:%d], v[%d:%d]' % (16 + hh, 17 + hh, 16 + hh, 17 + hh, B + 16 + hh, B + 17 + hh))
        for hh in (0, 2): a('v_pk_add_f32 v[%d:%d], v[%d:%d], v[%d:%d]' % (16 + hh, 17 + hh, 16 + hh, 17 + hh, 20 + hh, 21 + hh))
        for k in range(2): a('v_add_f32_dpp v%d, v%d, v%d row_ror:8 row_mask:0xf bank_mask:0x3' % (16 + k, 16 + k, 16 + k))
        for k in range(2): a('v_add_f32_dpp v%d, v%d, v%d row_ror:8 row_mask:0xf bank_mask:0xc' % (16 + k, 18 + k, 18 + k))
        a('v_add_f32_dpp v16, v16, v16 row_shl:4 row_mask:0xf bank_mask:0x5')
        a('v_add_f32_dpp v16, v17, v17 row_shr:4 row_mask:0xf bank_mask:0xa')
        for sw in ('v_permlane16_swap_b32', 'v_permlane32_swap_b32'):
            a('v_mov_b32 v17, v16'); a('%s v16, v17' % sw); a('v_add_f32 v16, v16, v17')
        a('v_cmp_eq_u32 vcc, -1, v16')
    poll_rot(P['dsK'], dsissue, dscheck, nl, 'ds', P['dssleep'])
    stamp(8)
    rnd1(16); a('v_mul_f32 v16, v16, v62'); rnd1(16); a('v_add_f32 v16, v60, v16')
    a('v_cvt_pk_bf16_f32 v16, v16, v16')
    a('s_mov_b64 exec, 0xffff')
    a('buffer_store_short v16, v64, s[64:67], s15 offen')
    a('s_cmp_lg_u32 s9, 0')
    a.branch('s_cbranch_scc1 L_red_end')
    a('v_mov_b32 v18, s44'); a('v_mov_b32 v19, s45')
    a('s_mov_b64 exec, 1')
    a('buffer_store_dwordx2 v[18:19], v10, s[48:51], 0 offen')
    a.label('L_red_end')
    a('s_waitcnt vmcnt(0)')
    endwave(9)

    a.label('L_exit')
    a('s_endpgm')

    head = open('adaLN_cond__mha_block_cached__swiglu_ffn__decode.s.ref').read().split('\n')
    hdr = [l for l in head if l.startswith(';') and '@launch' not in l and 'Override launch' not in l and 'grid=ceil' not in l]
    out = '\n'.join(hdr) + '\n'
    out += '; generated by gen3.py params: %s\n' % json.dumps(P, sort_keys=True)
    out += '; @launch grid=(256,1,1) block=(768,1,1) lds=%d\n' % L_SIZE
    out += '.amdgcn_target "amdgcn-amd-amdhsa--gfx950"\n.text\n.globl %s\n.p2align 8\n.type %s,@function\n' % (KNAME, KNAME)
    out += a.text()
    assert a.maxv < 168, a.maxv
    out += '''.section .rodata,"a"
.p2align 6
.amdhsa_kernel %s
  .amdhsa_next_free_vgpr 168
  .amdhsa_next_free_sgpr 102
  .amdhsa_accum_offset 168
  .amdhsa_group_segment_fixed_size 0
  .amdhsa_kernarg_size 112
  .amdhsa_user_sgpr_count 2
  .amdhsa_user_sgpr_kernarg_segment_ptr 1
  .amdhsa_system_sgpr_workgroup_id_x 1
  .amdhsa_float_denorm_mode_32 3
.end_amdhsa_kernel
''' % KNAME
    return out

if __name__ == '__main__':
    kw = {}
    outp = sys.argv[1]
    for x in sys.argv[2:]:
        k, v = x.split('='); kw[k] = int(v)
    open(outp, 'w').write(gen(**kw))
```

```python
import sys, json
from asmlib import Asm, VM

KNAME = 'adaLN_cond__mha_block_cached__swiglu_ffn__decode_kernel'

W_MODP = 0x1000
W_MOD = 0xA000
W_RDYA = 0xE000
W_RDYB = 0xF000
W_QP = 0x10000
W_OM = 0x50000
W_CNT = 0x54000
W_OX = 0x60000
W_YS = 0x80000
YSC = 18432
W_DS = 0x100000
W_DIAG = 0x200000
W_SIZE = 0x400000
L_QFLAG = 0; L_TRIG = 4; L_FSFLAG = 8; L_OCNT = 12; L_MCNT = 16
L_QS = 64; L_FS = 320; L_H1S = 384; L_MPART = 9728
L_OPART = 1024; L_X2 = 5120; L_GU = 7680; L_WPART = 9728; L_DPART = 11264
L_SIZE = 11264 + 8 * 2304
DSR = 4608
def mktab(RF, RW, RL, RU, RN):
    role = lambda a: RF if a < 9 else RW if a < 18 else RL if a < 23 else RU if a < 28 else RN
    return [[role(AMAP[j][sp]) for sp in range(8)] for j in range(4)]
AMAP1 = [[0,4,8,28,29,30,27,9],[1,5,31,12,15,18,21,24],[2,6,10,13,16,19,22,25],[3,7,11,14,17,20,23,26]]
AMAP0 = [[4 * sp + j for sp in range(8)] for j in range(4)]
AMAP = AMAP1
LOG2E = 0x3fb8aa3b
SCALE = 0x3db504f3
INV576 = 0x3ae38e39
EPS = 0x3727c5ac
POLL_LIMIT = 400000

DEF = dict(diag=0, N=4, N0=4, N1=4, interleave=1, kv_nt=1, w_nt=1, trig=64, sleep=0, mlsleep=8, nslots=36, early_v=6, prio=3, wN=8, so=0, bprio=1, Nend=0, endk=12, h1sleep=4, qpsleep=4, qp0=0, fN=6, vgap=1, b0e=1, yssleep=0, oxsleep=0, fprio=0, abl=0, noclr=0, nowq=0, fonly=0, mod256=0, RF=14, RW=28, RL=28, RU=29, RN=30, clead=1, cleadF=0, xmap=1, evF=18, oxK=1, dsK=1, ysK=1, stg=6, amap=1, dssleep=0, rsleep=10, cF=2, fdiag=0, dryF=0, dryC=0, dryW=0, FN1=4, tap=0, vfirst=0, ys8=0, omlast=0, omfirst=1)

def gen(**kw):
    P = dict(DEF); P.update(kw)
    a = Asm()
    global AMAP
    AMAP = AMAP1 if P['amap'] else AMAP0
    NTAB = mktab(P['RF'], P['RW'], P['RL'], P['RU'], P['RN'])
    U = 2
    DIAG = P['diag']
    NT = ' nt' if P['kv_nt'] else ''
    WNT = ' nt' if P['w_nt'] else ''
    uid = [0]
    def L(n):
        uid[0] += 1
        return 'L_%s_%d' % (n, uid[0])
    def stamp(k):
        if DIAG: a('s_memrealtime s[%d:%d]' % (80 + 2 * k, 81 + 2 * k))
    def srd(d, lo, hi, size):
        a('s_mov_b32 s%d, s%d' % (d, lo)); a('s_mov_b32 s%d, s%d' % (d + 1, hi))
        a('s_mov_b32 s%d, 0x%x' % (d + 2, size)); a('s_mov_b32 s%d, 0x00020000' % (d + 3))
    def srd_off(d, lo, hi, off_sreg, size_total):
        a('s_add_u32 s%d, s%d, s%d' % (d, lo, off_sreg)); a('s_addc_u32 s%d, s%d, 0' % (d + 1, hi))
        a('s_sub_u32 s%d, 0x%x, s%d' % (d + 2, size_total, off_sreg)); a('s_mov_b32 s%d, 0x00020000' % (d + 3))
    def endwave(nst):
        if DIAG:
            stamp(9)
            a('s_waitcnt lgkmcnt(0)')
            a('s_mov_b64 exec, -1')
            a('v_mov_b32 v2, 0')
            for k in range(10):
                a('v_writelane_b32 v2, s%d, %d' % (80 + 2 * k, k))
            a('s_getreg_b32 s12, hwreg(HW_REG_XCC_ID)')
            a('v_writelane_b32 v2, s12, 10')
            a('s_getreg_b32 s12, hwreg(HW_REG_HW_ID)')
            a('v_writelane_b32 v2, s12, 11')
            a('s_mul_i32 s12, s2, 12'); a('s_add_u32 s12, s12, s3'); a('s_lshl_b32 s12, s12, 6')
            a('s_add_u32 s12, s12, 0x%x' % W_DIAG)
            a('v_lshlrev_b32 v3, 2, v1')
            a('s_mov_b64 exec, 0xffff')
            a('buffer_store_dword v2, v3, s[48:51], s12 offen')
        a('s_endpgm')
    def poll(loads, check, name):
        lp = L(name); dn = L(name + 'd')
        a('s_mov_b32 s14, %d' % POLL_LIMIT)
        a.label(lp)
        for t in loads: a(t)
        a('s_waitcnt vmcnt(0)')
        check()
        a('s_cmp_eq_u64 vcc, 0')
        a.branch('s_cbranch_scc1 ' + dn)
        if P['sleep']: a('s_sleep %d' % P['sleep'])
        a('s_sub_u32 s14, s14, 1')
        a.branch('s_cbranch_scc0 ' + lp)
        a.label(dn)
    def tagcheck(regs):
        def f():
            a('v_cmp_ne_u64 vcc, s[44:45], v[%d:%d]' % (regs[0] + 2, regs[0] + 3))
            for r in regs[1:]:
                a('v_cmp_ne_u64 s[12:13], s[44:45], v[%d:%d]' % (r + 2, r + 3))
                a('s_or_b64 vcc, vcc, s[12:13]')
        return f
    def ldsflag_wait(off, vz, vt, sleep):
        lp = L('fw')
        a.label(lp)
        a('ds_read_b32 v%d, v%d offset:%d' % (vt, vz, off))
        a('s_waitcnt lgkmcnt(0)')
        a('v_readfirstlane_b32 s12, v%d' % vt)
        a('s_cmp_lg_u32 s12, 0')
        dn = L('fwd')
        a.branch('s_cbranch_scc1 ' + dn)
        a('s_sleep %d' % sleep)
        a.branch('s_branch ' + lp)
        a.label(dn)
    def allred(regs, tmps, op):
        for sh in (8, 4, 2, 1):
            for r in regs: a('%s_dpp v%d, v%d, v%d row_ror:%d row_mask:0xf bank_mask:0xf' % (op, r, r, r, sh))
        for sw in ('v_permlane16_swap_b32', 'v_permlane32_swap_b32'):
            for r, t in zip(regs, tmps): a('v_mov_b32 v%d, v%d' % (t, r))
            for r, t in zip(regs, tmps): a('%s v%d, v%d' % (sw, r, t))
            for r, t in zip(regs, tmps): a('%s v%d, v%d, v%d' % (op, r, r, t))
    def red8_g(acc):
        for k in range(4): a('v_permlane32_swap_b32 v%d, v%d' % (acc[k], acc[k + 4]))
        for k in range(4): a('v_add_f32 v%d, v%d, v%d' % (acc[k], acc[k], acc[k + 4]))
        for k in range(2): a('v_permlane16_swap_b32 v%d, v%d' % (acc[k], acc[k + 2]))
        for k in range(2): a('v_add_f32 v%d, v%d, v%d' % (acc[k], acc[k], acc[k + 2]))
    def pairperm(A, B, spare):
        lo = []; hi = []
        for x, y in zip(A, B):
            a('v_perm_b32 v%d, v%d, v%d, s76' % (spare, y, x))
            a('v_perm_b32 v%d, v%d, v%d, s77' % (y, y, x))
            lo.append(spare); hi.append(y); spare = x
        return lo, hi, spare
    def rnd2(x, y, t):
        a('v_cvt_pk_bf16_f32 v%d, v%d, v%d' % (t, x, y))
        a('v_lshlrev_b32 v%d, 16, v%d' % (x, t))
        a('v_and_b32 v%d, s78, v%d' % (y, t))
    def rnd1(x):
        a('v_cvt_pk_bf16_f32 v%d, v%d, v%d' % (x, x, x))
        a('v_and_b32 v%d, s78, v%d' % (x, x))
    def ln_stats(xs, s1, s2, t1, t2):
        a('v_mul_f32 v%d, v%d, v%d' % (s2, xs[0], xs[0]))
        a('v_add_f32 v%d, v%d, v%d' % (s1, xs[0], xs[1]))
        a('v_fmac_f32 v%d, v%d, v%d' % (s2, xs[1], xs[1]))
        for x in xs[2:]:
            a('v_add_f32 v%d, v%d, v%d' % (s1, s1, x))
            a('v_fmac_f32 v%d, v%d, v%d' % (s2, x, x))
        allred([s1, s2], [t1, t2], 'v_add_f32')
        a('v_mul_f32 v%d, 0x%x, v%d' % (s1, INV576, s1))
        a('v_mul_f32 v%d, 0x%x, v%d' % (s2, INV576, s2))
        a('v_fma_f32 v%d, -v%d, v%d, v%d' % (s2, s1, s1, s2))
        a('v_max_f32 v%d, 0, v%d' % (s2, s2))
        rnd2(s1, s2, t1)
        a('v_add_f32 v%d, 0x%x, v%d' % (s2, EPS, s2))
        rnd1(s2)
        a('v_sqrt_f32 v%d, v%d' % (s2, s2))
        rnd1(s2)
        a('v_rcp_f32 v%d, v%d' % (s2, s2))
    def ln_apply(pairs, mean, rs, t):
        for (x0, x1, c0, c1, s0, s1, o) in pairs:
            a('v_sub_f32 v%d, v%d, v%d' % (x0, x0, mean)); a('v_sub_f32 v%d, v%d, v%d' % (x1, x1, mean))
        for (x0, x1, c0, c1, s0, s1, o) in pairs: rnd2(x0, x1, o)
        for (x0, x1, c0, c1, s0, s1, o) in pairs:
            a('v_mul_f32 v%d, v%d, v%d' % (x0, x0, rs)); a('v_mul_f32 v%d, v%d, v%d' % (x1, x1, rs))
        for (x0, x1, c0, c1, s0, s1, o) in pairs: rnd2(x0, x1, o)
        for (x0, x1, c0, c1, s0, s1, o) in pairs:
            a('v_mul_f32 v%d, v%d, v%d' % (x0, x0, c0)); a('v_mul_f32 v%d, v%d, v%d' % (x1, x1, c1))
        for (x0, x1, c0, c1, s0, s1, o) in pairs: rnd2(x0, x1, o)
        for (x0, x1, c0, c1, s0, s1, o) in pairs:
            a('v_add_f32 v%d, v%d, v%d' % (x0, x0, s0)); a('v_add_f32 v%d, v%d, v%d' % (x1, x1, s1))
        for (x0, x1, c0, c1, s0, s1, o) in pairs: a('v_cvt_pk_bf16_f32 v%d, v%d, v%d' % (o, x0, x1))
    def silu(xs, ts):
        for x, t in zip(xs, ts): a('v_mul_f32 v%d, 0x%x, v%d' % (t, LOG2E ^ 0x80000000, x))
        for x, t in zip(xs, ts): a('v_exp_f32 v%d, v%d' % (t, t))
        for x, t in zip(xs, ts): a('v_add_f32 v%d, 1.0, v%d' % (t, t))
        for x, t in zip(xs, ts): a('v_rcp_f32 v%d, v%d' % (t, t))
        for x, t in zip(xs, ts): a('v_mul_f32 v%d, v%d, v%d' % (x, x, t))
    def sum_publish(nparts, lbase, wsbase, rstride, idreg, wv):
        a('s_mul_i32 s12, s%d, 48' % wv)
        a('v_add_u32 v4, s12, v1')
        a('v_lshlrev_b32 v5, 4, v4')
        a('v_lshrrev_b32 v6, 2, v4')
        a('s_mov_b32 s13, %d' % rstride)
        a('v_mul_lo_u32 v6, s13, v6')
        a('v_and_b32 v7, 3, v4')
        a('v_lshl_add_u32 v6, v7, 4, v6')
        a('s_lshl_b32 s12, s%d, 6' % idreg)
        a('s_add_u32 s15, s12, 0x%x' % wsbase)
    def sum_publish2(nparts, lbase):
        a('s_mov_b32 exec_lo, -1'); a('s_mov_b32 exec_hi, 0xffff')
        for k in range(nparts):
            a('ds_read_b128 v[%d:%d], v5 offset:%d' % (24 + 4 * k, 27 + 4 * k, lbase + k * 2304))
        n = nparts; step = 1
        a('s_waitcnt lgkmcnt(0)')
        while step < nparts:
            for k in range(0, nparts, 2 * step):
                for hh in (0, 2):
                    x = 24 + 4 * k + hh; y = 24 + 4 * (k + step) + hh
                    a('v_pk_add_f32 v[%d:%d], v[%d:%d], v[%d:%d]' % (x, x + 1, x, x + 1, y, y + 1))
            step *= 2
        for k in range(4): a('v_min_u32 v%d, -2, v%d' % (24 + k, 24 + k))
        a('buffer_store_dwordx4 v[24:27], v6, s[48:51], s15 offen sc1')

    def poll2(loads, check, name, filler=None, sleep=0):
        lp = L(name); dn = L(name + 'd'); wt = L(name + 'w')
        a('s_mov_b32 s14, %d' % POLL_LIMIT)
        if filler:
            for t in loads: a(t)
            filler()
            a.branch('s_branch ' + wt)
        a.label(lp)
        for t in loads: a(t)
        if filler: a.label(wt)
        a('s_waitcnt vmcnt(0)')
        check()
        a('s_cmp_eq_u64 vcc, 0')
        a.branch('s_cbranch_scc1 ' + dn)
        if sleep: a('s_sleep %d' % sleep)
        a('s_sub_u32 s14, s14, 1')
        a.branch('s_cbranch_scc0 ' + lp)
        a.label(dn)
    def poll_rot(K, issue, check, n, name, sleep=0):
        lp = L(name); dn = L(name + 'd')
        a('s_mov_b32 s14, %d' % POLL_LIMIT)
        for k in range(K):
            issue(k)
            if k < K - 1: a('s_sleep %d' % P['stg'])
        a.label(lp)
        for k in range(K):
            a('s_waitcnt vmcnt(%d)' % ((K - 1) * n))
            check(k)
            a('s_cmp_eq_u64 vcc, 0')
            a.branch('s_cbranch_scc1 ' + dn)
            if sleep: a('s_sleep %d' % sleep)
            issue(k)
        a('s_sub_u32 s14, s14, 1')
        a.branch('s_cbranch_scc0 ' + lp)
        a.label(dn)
    def ldscnt_wait(off, vz, vt, minval, sleep):
        lp = L('cw'); dn = L('cwd')
        a.label(lp)
        a('ds_read_b32 v%d, v%d offset:%d' % (vt, vz, off))
        a('s_waitcnt lgkmcnt(0)')
        a('v_readfirstlane_b32 s12, v%d' % vt)
        a('s_cmp_ge_u32 s12, %d' % minval)
        a.branch('s_cbranch_scc1 ' + dn)
        a('s_sleep %d' % sleep)
        a.branch('s_branch ' + lp)
        a.label(dn)
    def tree_add4(bases):
        step = 1; n = len(bases)
        while step < n:
            for k in range(0, n, 2 * step):
                for hh in (0, 2):
                    x = bases[k] + hh; y = bases[k + step] + hh
                    a('v_pk_add_f32 v[%d:%d], v[%d:%d], v[%d:%d]' % (x, x + 1, x, x + 1, y, y + 1))
            step *= 2
    def half_reduce_write(Y, vA, vC, lbase):
        prs = [(Y[k], Y[k + 4]) for k in range(4)] + [(Y[8 + k], Y[12 + k]) for k in range(4)] + [(Y[16], Y[17])]
        for x, y in prs: a('v_permlane32_swap_b32 v%d, v%d' % (x, y))
        for x, y in prs: a('v_add_f32 v%d, v%d, v%d' % (x, x, y))
        a('ds_write_b128 v%d, v[%d:%d] offset:%d' % (vA, Y[0], Y[0] + 3, lbase))
        a('ds_write_b128 v%d, v[%d:%d] offset:%d' % (vA, Y[8], Y[8] + 3, lbase + 1024))
        a('ds_write_b32 v%d, v%d offset:%d' % (vC, Y[16], lbase + 2048))
    def tag_ready():
        a('s_waitcnt lgkmcnt(0)')
        a('s_add_u32 s44, s44, 0x7f4a7c15'); a('s_addc_u32 s45, s45, 0x9e3779b9')

    a.raw(KNAME + ':')
    a('s_cmp_ge_u32 s2, 256')
    a.branch('s_cbranch_scc1 L_exit')
    a('s_load_dwordx16 s[16:31], s[0:1], 0')
    a('s_load_dwordx8 s[32:39], s[0:1], 64')
    a('s_load_dwordx4 s[40:43], s[0:1], 96')
    if DIAG:
        for k in range(80, 100): a('s_mov_b32 s%d, 0' % k)
    stamp(0)
    a('v_lshrrev_b32 v2, 6, v0')
    a('v_and_b32 v1, 63, v0')
    a('v_readfirstlane_b32 s3, v2')
    a('s_and_b32 s4, s2, 7')
    a('s_lshr_b32 s5, s2, 3')
    inv = {AMAP[j][sp]: 4 * sp + j for j in range(4) for sp in range(8)}
    for k in range(8): a('s_mov_b32 s%d, 0x%x' % (56 + k, sum(inv[4 * k + i] << (8 * i) for i in range(4))))
    a('s_lshr_b32 m0, s5, 2'); a('s_and_b32 s13, s5, 3'); a('s_lshl_b32 s13, s13, 3')
    a('s_movrels_b32 s14, s56')
    a('s_lshr_b32 s14, s14, s13')
    a('s_bfe_u32 s7, s14, 0x30002')
    if P['xmap']:
        a('s_add_u32 s12, s4, s7'); a('s_and_b32 s12, s12, 7'); a('s_lshl_b32 s12, s12, 2')
    else: a('s_lshl_b32 s12, s4, 2')
    a('s_and_b32 s6, s14, 3'); a('s_add_u32 s6, s6, s12')
    a('s_lshl_b32 s8, s6, 3'); a('s_add_u32 s8, s8, s7')
    a('s_mov_b32 s72, 0xcccccccc'); a('s_mov_b32 s73, 0xcccccccc')
    a('s_mov_b32 s74, 0xaaaaaaaa'); a('s_mov_b32 s75, 0xaaaaaaaa')
    a('s_mov_b32 s76, 0x05040100'); a('s_mov_b32 s77, 0x07060302'); a('s_mov_b32 s78, 0xffff0000')
    a('v_mov_b32 v10, 0'); a('v_mov_b32 v11, 1')
    a('v_lshlrev_b32 v4, 4, v1'); a('v_lshlrev_b32 v2, 2, v1')
    a('s_cmp_lg_u32 s3, 8')
    a.branch('s_cbranch_scc1 L_noinit')
    a('s_mov_b64 exec, 0xff')
    a('ds_write_b32 v2, v10 offset:0')
    a('s_mov_b64 exec, -1')
    a.label('L_noinit')
    a('s_cmp_ge_u32 s3, 8')
    a.branch('s_cbranch_scc1 L_helper')

    starts = [[sum(NTAB[j][:sp]) for sp in range(8)] for j in range(4)]
    SJ = [sum(NTAB[j]) for j in range(4)]
    for j in range(4): assert SJ[j] < 256
    for sp in range(8):
        a('s_mov_b32 s%d, 0x%x' % (56 + sp, sum(starts[j][sp] << (8 * j) for j in range(4))))
        a('s_mov_b32 s%d, 0x%x' % (64 + sp, sum(NTAB[j][sp] << (8 * j) for j in range(4))))
    a('s_mov_b32 m0, s7')
    a('s_and_b32 s14, s6, 3'); a('s_lshl_b32 s14, s14, 3')
    a('s_movrels_b32 s12, s56'); a('s_movrels_b32 s9, s64')
    a('s_lshr_b32 s12, s12, s14'); a('s_and_b32 s12, s12, 0xff'); a('s_lshr_b32 s9, s9, s14'); a('s_and_b32 s9, s9, 0xff')
    a('s_lshl_b32 s12, s12, 13'); a('s_lshl_b32 s13, s6, 21'); a('s_add_u32 s12, s12, s13')
    a('s_lshl_b32 s13, s3, 10')
    a('v_add_u32 v2, s13, v4')
    a('s_lshl_b32 s54, s9, 13'); a('s_mov_b32 s55, 0x00020000')
    a('s_waitcnt lgkmcnt(0)')
    if P['b0e']: a('s_barrier')
    a('s_load_dwordx2 s[44:45], s[42:43], 0')
    a('s_add_u32 s52, s18, s12'); a('s_addc_u32 s53, s19, 0')
    a('s_cmp_lt_u32 s5, 9')
    a.branch('s_cbranch_scc1 L_attF')
    STEP = 8192
    NS = 36
    sreg = lambda s: 24 + 4 * s
    def attention(R, ffn):
        vm = VM(a)
        free = list(range(NS))
        kslot = {}; vslot = {}
        NN = [P['FN1'] if ffn else P['N1']]
        nb = (R + 15) // 16
        for j in range(4):
            for sp in range(8):
                if (AMAP[j][sp] < 9) == ffn: assert 16 * (nb - 1) < NTAB[j][sp] <= R
        def ld_kv(kind, j):
            s = free.pop(0)
            (kslot if kind == 'K' else vslot)[j] = s
            vm.throttle(NN[0])
            a('s_mov_b32 s11, 0x%x' % (j * STEP))
            vm.issue((kind, j), 'buffer_load_dwordx4 v[%d:%d], v2, s[%d:%d], s11 offen%s' % (sreg(s), sreg(s) + 3, *((52, 55) if kind == 'K' else (56, 59)), NT))
        for j in range(P['N0']): ld_kv('K', j)
        a('s_add_u32 s56, s20, s12'); a('s_addc_u32 s57, s21, 0'); a('s_mov_b32 s58, s54'); a('s_mov_b32 s59, s55')
        srd(48, 42, 43, W_SIZE)
        a('s_sub_u32 s13, s9, %d' % (16 * (nb - 1))); a('s_bfm_b32 s60, s13, 0'); a('s_mul_i32 s60, s60, 0x10001'); a('s_mov_b32 s61, s60')
        for k in range(8): a('v_mov_b32 v%d, 0' % (16 + k))
        a('v_and_b32 v3, 15, v1'); a('v_lshlrev_b32 v13, 4, v3'); a('v_lshlrev_b32 v3, 5, v3'); a('v_lshrrev_b32 v5, 4, v1')
        a('v_lshl_add_u32 v3, v5, 3, v3'); a('s_lshl_b32 s12, s3, 9'); a('v_add_u32 v3, s12, v3')
        a('s_lshl_b32 s15, s8, 9'); a('s_add_u32 s15, s15, 0x%x' % W_OX)
        if not P['b0e']: a('s_barrier')
        for j in range(P['N0'], R):
            if P['vfirst'] and j == P['vfirst']: ld_kv('V', 0)
            ld_kv('K', j)
        EV = min(P['evF'] if ffn else P['early_v'], NS - R, R)
        for j in range(1 if P['vfirst'] else 0, EV): ld_kv('V', j)
        G = []
        def ld_g(n_, prog):
            s_ = sreg(free.pop(0)); G.append(s_)
            for e in range(2):
                vm.throttle(P['fN'])
                a('s_mov_b32 s11, %d' % ((2 * n_ + e) * 9216))
                vm.issue('g', 'buffer_load_dwordx2 v[%d:%d], v5, s[64:67], s11 offen%s' % (s_ + 2 * e, s_ + 2 * e + 1, WNT))
                if prog: prog()
        if ffn:
            a('s_mul_i32 s9, s4, 9'); a('s_add_u32 s9, s9, s5'); a('s_lshr_b32 s79, s3, 1')
            a('s_bitcmp0_b32 s3, 0'); a('s_cselect_b32 s12, s28, s30'); a('s_cselect_b32 s13, s29, s31')
            a('s_lshl_b32 s14, s9, 7'); a('s_mul_i32 s46, s79, %d' % (144 * 9216)); a('s_add_u32 s14, s14, s46')
            srd_off(64, 12, 13, 14, 576 * 9216)
            a('v_lshrrev_b32 v5, 4, v1'); a('v_mul_u32_u24 v5, %d, v5' % (36 * 9216)); a('v_and_b32 v14, 15, v1'); a('v_lshl_add_u32 v5, v14, 3, v5')
            if EV == R:
                while free and len(G) < 18: ld_g(len(G), None)
        stamp(1)
        tag_ready()
        ldsflag_wait(L_QFLAG, 10, 12, 2)
        a('ds_read_b128 v[12:15], v13 offset:%d' % L_QS)
        a('s_waitcnt lgkmcnt(0)')
        stamp(2)
        NN[0] = P['N']
        S = [6, 7]; PH = [8, 9]
        if nb == 1: a('v_mov_b32 v7, 0xff800000')
        def kbatch(b):
            n = min(16, R - 16 * b)
            X = [sreg(kslot[16 * b + j]) for j in range(n)]
            for g in range(0, n, 4):
                js = list(range(g, min(n, g + 4)))
                vm.wait_tag(('K', 16 * b + js[-1]))
                for k in range(4):
                    for j in js:
                        a('v_dot2_f32_bf16 v%d, v%d, v%d, %s' % (X[j], X[j] + k, 12 + k, '0' if k == 0 else 'v%d' % X[j]))
            for i in range(min(n, 8)): a('v_add_f32_dpp v%d, v%d, v%d row_ror:8 row_mask:0xf bank_mask:0x3' % (X[i], X[i], X[i]))
            for i in range(8):
                if i + 8 < n: a('v_add_f32_dpp v%d, v%d, v%d row_ror:8 row_mask:0xf bank_mask:0xc' % (X[i], X[i + 8], X[i + 8]))
            for i in range(min(n, 4)): a('v_add_f32_dpp v%d, v%d, v%d row_shl:4 row_mask:0xf bank_mask:0x5' % (X[i], X[i], X[i]))
            for i in range(4):
                if i + 4 < n: a('v_add_f32_dpp v%d, v%d, v%d row_shr:4 row_mask:0xf bank_mask:0xa' % (X[i], X[i + 4], X[i + 4]))
            for i in range(min(n, 4)): a('v_add_f32_dpp v%d, v%d, v%d quad_perm:[2,3,0,1] row_mask:0xf bank_mask:0xf' % (X[i], X[i], X[i]))
            for i in range(2):
                if i + 2 < n: a('v_cndmask_b32 v%d, v%d, v%d, s[72:73]' % (X[i], X[i], X[i + 2]))
            for i in range(min(n, 2)): a('v_add_f32_dpp v%d, v%d, v%d quad_perm:[1,0,3,2] row_mask:0xf bank_mask:0xf' % (X[i], X[i], X[i]))
            if b == nb - 1:
                a('v_mov_b32 v%d, 0xff800000' % (X[0] + 1))
                a('v_cndmask_b32 v%d, v%d, v%d, s[74:75]' % (X[0], X[0], X[1]))
                a('v_cndmask_b32 v%d, v%d, v%d, s[60:61]' % (S[b], X[0] + 1, X[0]))
            else:
                a('v_cndmask_b32 v%d, v%d, v%d, s[74:75]' % (S[b], X[0], X[1]))
            for j in range(n): free.append(kslot[16 * b + j])
        nv = EV
        for b in range(nb):
            kbatch(b)
            last = ('K', min(R, 16 * b + 32) - 1)
            c = 0
            while nv < R and free and (c < P['vgap'] or (b < nb - 1 and last not in vm.q[:vm.done])):
                ld_kv('V', nv); nv += 1; c += 1
        stamp(3)
        rnd2(6, 7, 14)
        if nb == 3: rnd1(0)
        for s_ in S: a('v_mul_f32 v%d, 0x%x, v%d' % (s_, SCALE, s_))
        rnd2(6, 7, 14)
        if nb == 3:
            rnd1(0); a('v_max3_f32 v12, v6, v7, v0')
        else: a('v_max_f32 v12, v6, v7')
        allred([12], [14], 'v_max_f32')
        for s_ in S: a('v_sub_f32 v%d, v%d, v12' % (s_, s_))
        for s_ in S: a('v_mul_f32 v%d, 0x%x, v%d' % (s_, LOG2E, s_))
        for s_ in S: a('v_exp_f32 v%d, v%d' % (s_, s_))
        a('v_add_f32 v13, v6, v7')
        if nb == 3: a('v_add_f32 v13, v13, v0')
        for s_, h_ in zip(S, PH): a('v_cvt_pk_bf16_f32 v%d, 0, v%d' % (h_, s_))
        for s_ in S: a('v_cvt_pk_bf16_f32 v%d, v%d, 0' % (s_, s_))
        allred([13], [14], 'v_add_f32')
        a('v_mul_f32 v13, 0.25, v13')
        assert nb <= 2
        a('s_and_b32 s14, s6, 3'); a('s_lshl_b32 s14, s14, 3'); a('s_lshr_b32 s12, 0x%x, s14' % sum(SJ[j] << (8 * j) for j in range(4))); a('s_and_b32 s12, s12, 0xff')
        a('s_sub_u32 s69, 256, s12'); a('s_lshl_b32 s69, s69, 3')
        a('s_lshl_b32 s12, s12, 13'); a('s_lshl_b32 s13, s6, 21'); a('s_add_u32 s47, s12, s13')
        a('s_lshl_b32 s68, s6, 8'); a('s_add_u32 s68, s68, 0x%x' % W_CNT)
        CLAIM = 'buffer_atomic_add v0, v10, s[48:51], s68 offen sc0 sc1'
        def claim(track, t=None):
            if t is None or not P['tap']: a('v_mov_b32 v0, %d' % U)
            else:
                a('s_cmp_ge_u32 s%d, s63' % t); a('s_cselect_b32 s62, 1, 2')
                a('v_mov_b32 v0, s62')
            a('s_mov_b64 exec, 1')
            if track: vm.issue('claim', CLAIM)
            else: a(CLAIM)
            a('s_mov_b64 exec, -1')
        def unit_loads(B, t, track):
            a('s_lshl_b32 s11, s%d, 10' % t)
            if P['tap']:
                mk = 64 + 2 * (t - 70)
                a('s_add_u32 s12, s%d, s62' % t); a('s_min_u32 s12, s12, s69'); a('s_sub_u32 s12, s12, s%d' % t)
                a('s_cmp_eq_u32 s12, 2'); a('s_cselect_b64 s[%d:%d], -1, 0' % (mk, mk + 1)); a('s_cselect_b32 s13, s11, s54')
            for i in range(2 * U):
                txt = 'buffer_load_dwordx4 v[%d:%d], v4, s[%d:%d], s%d offen offset:%d%s' % (B[i], B[i] + 3, *((52, 55) if i < U else (56, 59)), 13 if (P['tap'] and i % U) else 11, 1024 * (i % U), NT)
                if track: vm.issue('u', txt)
                else: a(txt)
        def dyn_start():
            DA_ = [sreg(free.pop(0)) for _ in range(2 * U)]
            a('s_add_u32 s52, s18, s47'); a('s_addc_u32 s53, s19, 0'); a('s_lshl_b32 s54, s69, 10')
            a('s_add_u32 s56, s20, s47'); a('s_addc_u32 s57, s21, 0'); a('s_mov_b32 s58, s54')
            if P['tap']:
                a('s_mov_b32 s62, 2'); a('s_sub_u32 s63, s69, %d' % P['tap'])
            vm.wait_tag('claim')
            stamp(4)
            a('v_readfirstlane_b32 s70, v0')
            a('s_min_u32 s70, s70, s69')
            unit_loads(DA_, 70, True)
            claim(True, 70)
            return DA_
        def unit_proc(B, Q, t):
            X = B[:U]; V = B[U:]
            for k in range(4):
                for x in X: a('v_dot2_f32_bf16 v%d, v%d, v%d, %s' % (x, x + k, Q + k, '0' if k == 0 else 'v%d' % x))
            for sh in (8, 4, 2, 1):
                for x in X: a('v_add_f32_dpp v%d, v%d, v%d row_ror:%d row_mask:0xf bank_mask:0xf' % (x, x, x, sh))
            x0, x1 = X
            rnd2(x0, x1, 14)
            for x in X: a('v_mul_f32 v%d, 0x%x, v%d' % (x, SCALE, x))
            if P['tap']: a('v_mov_b32 v15, 0xff800000')
            rnd2(x0, x1, 14)
            if P['tap']: a('v_cndmask_b32 v%d, v15, v%d, s[%d:%d]' % (x1, x1, 64 + 2 * (t - 70), 65 + 2 * (t - 70)))
            a('v_max3_f32 v14, v%d, v%d, v12' % (x0, x1))
            for sw in ('v_permlane16_swap_b32', 'v_permlane32_swap_b32'):
                a('v_mov_b32 v15, v14'); a('%s v14, v15' % sw); a('v_max_f32 v14, v14, v15')
            a('v_sub_f32 v15, v12, v14')
            for x in X: a('v_sub_f32 v%d, v%d, v14' % (x, x))
            a('v_mul_f32 v15, 0x%x, v15' % LOG2E)
            for x in X: a('v_mul_f32 v%d, 0x%x, v%d' % (x, LOG2E, x))
            a('v_mov_b32 v12, v14')
            a('v_exp_f32 v14, v15')
            for x in X: a('v_exp_f32 v%d, v%d' % (x, x))
            for k in range(4): a('v_pk_mul_f32 v[%d:%d], v[%d:%d], v[14:15] op_sel_hi:[1,0]' % (16 + 2 * k, 17 + 2 * k, 16 + 2 * k, 17 + 2 * k))
            a('v_fma_f32 v13, v13, v14, v%d' % x0); a('v_add_f32 v13, v13, v%d' % x1)
            for x in X:
                a('v_cvt_pk_bf16_f32 v%d, 0, v%d' % (x + 1, x)); a('v_cvt_pk_bf16_f32 v%d, v%d, 0' % (x, x))
            for x, v in zip(X, V):
                for k in range(4):
                    a('v_dot2c_f32_bf16 v%d, v%d, v%d' % (16 + 2 * k, x, v + k))
                    a('v_dot2c_f32_bf16 v%d, v%d, v%d' % (17 + 2 * k, x + 1, v + k))
        def dyn_loop(DA_):
            DB_ = [sreg(free.pop(0)) for _ in range(2 * U)]
            Q = sreg(free.pop(0))
            a('v_and_b32 v14, 15, v1'); a('v_lshlrev_b32 v14, 4, v14')
            a('ds_read_b128 v[%d:%d], v14 offset:%d' % (Q, Q + 3, L_QS))
            a('s_waitcnt lgkmcnt(0)')
            lp = L('dyn'); dn = L('dynd')
            a.label(lp)
            for cur, nxt, tc, tn in ((DA_, DB_, 70, 71), (DB_, DA_, 71, 70)):
                sk = L('dyns')
                a('s_cmp_ge_u32 s%d, s69' % tc)
                a.branch('s_cbranch_scc1 ' + dn)
                a('s_waitcnt vmcnt(0)')
                a('v_readfirstlane_b32 s%d, v0' % tn)
                a('s_cmp_ge_u32 s%d, s69' % tn)
                a.branch('s_cbranch_scc1 ' + sk)
                unit_loads(nxt, tn, False)
                claim(False, tn)
                a.label(sk)
                unit_proc(cur, Q, tc)
            a.branch('s_branch ' + lp)
            a.label(dn)
            a('s_waitcnt vmcnt(1)')
            for r in DA_ + DB_ + [Q]: free.append((r - 24) // 4)
        def pv(j):
            vm.wait_tag(('V', j))
            Rg = sreg(vslot[j]); b = j >> 4; i = j & 15
            for k in range(4):
                a('v_dot2c_f32_bf16_dpp v%d, v%d, v%d row_newbcast:%d row_mask:0xf bank_mask:0xf' % (16 + 2 * k, S[b], Rg + k, i))
                a('v_dot2c_f32_bf16_dpp v%d, v%d, v%d row_newbcast:%d row_mask:0xf bank_mask:0xf' % (17 + 2 * k, PH[b], Rg + k, i))
            free.append(vslot[j])
        pvn = [0]
        def opportunistic_pv(maxn=99):
            n = 0
            while pvn[0] < R and ('V', pvn[0]) in vm.q[:vm.done] and n < maxn:
                pv(pvn[0]); pvn[0] += 1; n += 1
        def need_slot():
            while not free:
                pv(pvn[0]); pvn[0] += 1
        for j in range(nv, R):
            if P['Nend'] and not ffn and j >= R - P['endk']: NN[0] = P['Nend']
            need_slot()
            if not ffn and j == R - P['clead']: claim(True)
            ld_kv('V', j)
            opportunistic_pv(2)
        if not ffn:
            sk = L('tg')
            a('s_cmp_lg_u32 s3, 0')
            a.branch('s_cbranch_scc1 ' + sk)
            a('ds_write_b32 v10, v11 offset:%d' % L_TRIG)
            a.label(sk)
        def combine():
            stamp(5)
            for sw in ('v_permlane16_swap_b32', 'v_permlane32_swap_b32'):
                a('v_mov_b32 v15, v13'); a('%s v13, v15' % sw); a('v_add_f32 v13, v13, v15')
            red8_g([16 + k for k in range(8)])
            a('s_lshl_b32 s13, s3, 3'); a('v_mov_b32 v14, s13')
            a('ds_write_b64 v3, v[16:17] offset:%d' % L_OPART)
            a('s_mov_b64 exec, 1')
            a('ds_write_b64 v14, v[12:13] offset:%d' % L_FS)
            a('ds_add_rtn_u32 v12, v10, v11 offset:%d' % L_OCNT)
            a('s_mov_b32 exec_lo, -1')
            a('v_and_b32 v14, 7, v1'); a('v_lshlrev_b32 v14, 3, v14')
            a('s_waitcnt lgkmcnt(0)')
            a('v_readfirstlane_b32 s12, v12')
            dn = L('oxd')
            if P['dryC']:
                a('s_add_u32 s13, s12, 1'); a('s_and_b32 s13, s13, 6'); a('s_cmp_lg_u32 s13, 0')
            else: a('s_cmp_lg_u32 s12, 7')
            a.branch('s_cbranch_scc1 ' + dn)
            fr = [sreg(s) for s in free]
            assert len(fr) >= 8
            a('ds_read_b64 v[12:13], v14 offset:%d' % L_FS)
            for w in range(8): a('ds_read_b128 v[%d:%d], v4 offset:%d' % (fr[w], fr[w] + 3, L_OPART + 512 * w))
            a('s_waitcnt lgkmcnt(8)')
            a('v_max_f32_dpp v14, v12, v12 quad_perm:[1,0,3,2] row_mask:0xf bank_mask:0xf')
            a('v_max_f32_dpp v14, v14, v14 quad_perm:[2,3,0,1] row_mask:0xf bank_mask:0xf')
            a('v_max_f32_dpp v14, v14, v14 row_half_mirror row_mask:0xf bank_mask:0xf')
            a('v_sub_f32 v12, v12, v14'); a('v_mul_f32 v12, 0x%x, v12' % LOG2E); a('v_exp_f32 v12, v12')
            a('s_lshl_b32 s13, s8, 4'); a('s_add_u32 s13, s13, 0x%x' % W_OM)
            a('v_mul_f32 v15, v13, v12')
            a('v_min_u32 v14, -2, v14')
            a('v_add_f32_dpp v15, v15, v15 quad_perm:[1,0,3,2] row_mask:0xf bank_mask:0xf')
            a('v_add_f32_dpp v15, v15, v15 quad_perm:[2,3,0,1] row_mask:0xf bank_mask:0xf')
            a('v_add_f32_dpp v15, v15, v15 row_half_mirror row_mask:0xf bank_mask:0xf')
            if P['omfirst']:
                assert not P['dryC']
                a('v_min_u32 v15, -2, v15')
                a('s_mov_b64 exec, 1')
                a('buffer_store_dwordx2 v[14:15], v10, s[48:51], s13 offen sc1')
                a('s_mov_b32 exec_lo, -1')
            for w in range(8):
                if w % 2 == 0: a('s_waitcnt lgkmcnt(%d)' % (6 - w))
                for c in range(4):
                    a('%s v%d, v12, v%d row_newbcast:%d row_mask:0xf bank_mask:0xf' % ('v_mul_f32_dpp' if w == 0 else 'v_fmac_f32_dpp', 16 + c, fr[w] + c, w))
            for k in range(4): a('v_min_u32 v%d, -2, v%d' % (16 + k, 16 + k))
            a('v_min_u32 v15, -2, v15')
            if P['dryC']:
                a('s_cmp_lg_u32 s12, 7')
                a.branch('s_cbranch_scc1 ' + dn)
            a('buffer_store_dwordx4 v[16:19], v4, s[48:51], s15 offen sc1')
            if not P['omfirst']:
                a('s_mov_b64 exec, 1')
                a('buffer_store_dwordx2 v[14:15], v10, s[48:51], s13 offen sc1')
            if not ffn: stamp(6)
            a.label(dn)
            a('s_mov_b64 exec, -1')
        done = [False]
        def progress():
            opportunistic_pv(2)
            if pvn[0] == R: done[0] = True
        if ffn:
            a('s_lshl_b32 s14, s9, 3'); a('s_add_u32 s14, s14, s3'); a('s_mul_i32 s14, s14, 9216')
            srd_off(60, 32, 33, 14, 4608 * 1152)
            while len(G) < 18:
                need_slot()
                ld_g(len(G), progress)
            while pvn[0] < R:
                pv(pvn[0]); pvn[0] += 1
            done[0] = True
            a('v_lshrrev_b32 v14, 5, v1'); a('v_mul_u32_u24 v14, 4608, v14'); a('v_and_b32 v6, 31, v1')
            a('v_lshl_add_u32 v15, v6, 2, v14'); a('v_add_u32 v15, 1024, v15'); a('v_lshl_add_u32 v14, v6, 4, v14')
            assert done[0]
            DA = []; DB = []
            DC = sreg(free.pop(0))
            for r in range(4):
                if r == 4 - (P['cleadF'] + 2) // 3: claim(True)
                for lst, off in ((DA, 0), (DB, 512)):
                    s = sreg(free.pop(0)); lst.append(s)
                    vm.throttle(P['fN'])
                    vm.issue('d', 'buffer_load_dwordx4 v[%d:%d], v14, s[60:63], 0 offen offset:%d%s' % (s, s + 3, r * 1152 + off, WNT))
                vm.issue('d', 'buffer_load_dword v%d, v15, s[60:63], 0 offen offset:%d%s' % (DC + r, r * 1152, WNT))
            if P['cleadF'] == 0:
                vm.throttle(P['cF']); claim(True)
            DA_ = dyn_start()
            dyn_loop(DA_)
            combine()
        else:
            while len(free) < 2 * U:
                pv(pvn[0]); pvn[0] += 1
            DA_ = dyn_start()
            while pvn[0] < R:
                pv(pvn[0]); pvn[0] += 1
            dyn_loop(DA_)
            combine()
            a('s_waitcnt vmcnt(0)')
        fr = [sreg(s) for s in free]
        assert len(fr) >= 9
        if not ffn or P['abl'] or P['so']:
            endwave(7); return
        a('v_lshrrev_b32 v3, 4, v1'); a('v_mul_u32_u24 v3, 18, v3'); a('s_mul_i32 s12, s79, 72'); a('v_add_u32 v3, s12, v3')
        a('v_and_b32 v7, 1, v1'); a('v_add3_u32 v7, v7, v3, 16'); a('v_and_b32 v12, 15, v1'); a('v_add_u32 v3, v3, v12')
        a('v_lshrrev_b32 v12, 1, v3'); a('v_lshlrev_b32 v12, 4, v12'); a('v_lshrrev_b32 v13, 1, v7'); a('v_lshlrev_b32 v13, 4, v13')
        a('s_mov_b32 s52, 0x%x' % W_MOD); a('s_mov_b32 s53, 0x%x' % (W_MOD + 4096)); a('s_mov_b32 s54, 0x%x' % (W_MOD + 8192)); a('s_mov_b32 s55, 0x%x' % (W_RDYB + 72 * 16))
        ld4 = lambda d, vo, so: 'buffer_load_dwordx4 v[%d:%d], v%d, s[48:51], s%d offen sc1' % (d, d + 3, vo, so)
        poll2([ld4(fr[0], 12, 53), ld4(fr[1], 12, 54), ld4(fr[2], 13, 53), ld4(fr[3], 13, 54)], tagcheck(fr[:4]), 'sbcb', sleep=4)
        for k in range(4): a('v_cndmask_b32 v%d, v%d, v%d, s[74:75]' % (fr[k], fr[k], fr[k] + 1))
        SBa, CBa, SBb, CBb = fr[7], fr[7] + 2, fr[8], fr[8] + 2
        for src, dst in ((fr[0], SBa), (fr[1], CBa), (fr[2], SBb), (fr[3], CBb)):
            a('v_lshlrev_b32 v%d, 16, v%d' % (dst, src)); a('v_and_b32 v%d, s78, v%d' % (dst + 1, src))
        a('v_lshlrev_b32 v3, 3, v3'); a('v_lshlrev_b32 v9, 3, v7')
        sum_publish(8, L_DPART, W_DS, DSR, 9, 3)
        a('v_mov_b32 v7, v9')
        a('v_lshlrev_b32 v8, 4, v1'); a('v_lshlrev_b32 v9, 2, v1')
        a('v_and_b32 v12, 15, v1'); a('v_lshrrev_b32 v13, 4, v1'); a('v_lshl_add_u32 v12, v12, 2, v13'); a('v_lshlrev_b32 v12, 2, v12')
        a('s_lshl_b32 s12, s3, 8'); a('v_add_u32 v12, s12, v12')
        a('v_lshrrev_b32 v4, 5, v1'); a('v_and_b32 v13, 3, v1'); a('v_lshl_add_u32 v13, v4, 2, v13'); a('v_lshlrev_b32 v13, 2, v13')
        a('s_lshl_b32 s12, s3, 5'); a('v_add_u32 v13, s12, v13')
        a('v_and_b32 v14, 31, v1'); a('v_lshl_add_u32 v4, v14, 1, v4'); a('s_mul_i32 s12, s3, 2304')
        a('v_lshlrev_b32 v14, 4, v4'); a('v_add_u32 v14, s12, v14'); a('v_lshlrev_b32 v15, 2, v4'); a('v_add_u32 v15, s12, v15')
        spare = 0
        gp = []
        for n_ in range(18):
            lo, hi, spare = pairperm([G[n_], G[n_] + 1], [G[n_] + 2, G[n_] + 3], spare)
            gp.append((lo, hi))
        dp = []
        for rp in range(2):
            A = [DA[2 * rp] + k for k in range(4)] + [DB[2 * rp] + k for k in range(4)] + [DC + 2 * rp]
            B = [DA[2 * rp + 1] + k for k in range(4)] + [DB[2 * rp + 1] + k for k in range(4)] + [DC + 2 * rp + 1]
            lo, hi, spare = pairperm(A, B, spare)
            dp.append((lo, hi))
        def bar_skip(nm):
            if P['dryF']:
                sk = L(nm)
                a('s_cmp_eq_u32 s70, 0')
                a.branch('s_cbranch_scc1 ' + sk)
                a('s_barrier')
                a.label(sk)
            else: a('s_barrier')
        if P['dryF']:
            a('s_mov_b32 s70, 0')
            a.label('L_fpass')
        for k in range(4): a('v_mov_b32 v%d, 0' % (16 + k))
        stamp(6)
        bar_skip('bx')
        stamp(7)
        a('ds_read_b128 v[%d:%d], v8 offset:%d' % (fr[0], fr[0] + 3, L_X2))
        a('ds_read_b128 v[%d:%d], v8 offset:%d' % (fr[1], fr[1] + 3, L_X2 + 1024))
        a('ds_read_b32 v20, v9 offset:%d' % (L_X2 + 2048))
        a('ds_read_b64 v[%d:%d], v3 offset:%d' % (fr[2], fr[2] + 1, L_X2))
        a('ds_read_b64 v[%d:%d], v7 offset:%d' % (fr[2] + 2, fr[2] + 3, L_X2))
        a('s_waitcnt lgkmcnt(2)')
        stamp(8)
        ln_stats([fr[0] + k for k in range(4)] + [fr[1] + k for k in range(4)] + [20], fr[3], fr[3] + 1, fr[3] + 2, fr[3] + 3)
        a('s_waitcnt lgkmcnt(0)')
        ln_apply([(fr[2], fr[2] + 1, CBa, CBa + 1, SBa, SBa + 1, 20), (fr[2] + 2, fr[2] + 3, CBb, CBb + 1, SBb, SBb + 1, 21)], fr[3], fr[3] + 1, 0)
        if P['fdiag']: stamp(1)
        for n_ in range(18):
            lo, hi = gp[n_]
            for k in range(2):
                a('v_dot2c_f32_bf16_dpp v%d, v%d, v%d row_newbcast:%d row_mask:0xf bank_mask:0xf' % (16 + 2 * k, 20 + (n_ >> 4), lo[k], n_ & 15))
                a('v_dot2c_f32_bf16_dpp v%d, v%d, v%d row_newbcast:%d row_mask:0xf bank_mask:0xf' % (17 + 2 * k, 20 + (n_ >> 4), hi[k], n_ & 15))
        a('v_permlane32_swap_b32 v16, v18'); a('v_permlane32_swap_b32 v17, v19')
        a('v_add_f32 v16, v16, v18'); a('v_add_f32 v17, v17, v19')
        a('v_permlane16_swap_b32 v16, v17')
        a('v_add_f32 v16, v16, v17')
        a('ds_write_b32 v12, v16 offset:%d' % L_GU)
        Y = [fr[k >> 2] + (k & 3) for k in range(18)]
        for y in Y: a('v_mov_b32 v%d, 0' % y)
        a('s_waitcnt lgkmcnt(0)')
        if P['fdiag']: stamp(2)
        bar_skip('b4')
        if P['fdiag']: stamp(3)
        for q in range(4):
            a('ds_read2st64_b32 v[%d:%d], v13 offset0:%d offset1:%d' % (16 + 2 * q, 17 + 2 * q, L_GU // 256 + 2 * q, L_GU // 256 + 2 * q + 1))
        a('s_waitcnt lgkmcnt(0)')
        a('v_pk_add_f32 v[16:17], v[16:17], v[18:19]'); a('v_pk_add_f32 v[20:21], v[20:21], v[22:23]')
        a('v_pk_add_f32 v[16:17], v[16:17], v[20:21]')
        rnd2(16, 17, 18)
        silu([16], [18])
        rnd1(16)
        a('v_mul_f32 v16, v16, v17')
        a('v_mov_b32_dpp v17, v16 quad_perm:[1,1,3,3] row_mask:0xf bank_mask:0xf')
        a('v_cvt_pk_bf16_f32 v16, v16, v17')
        for rp in range(2):
            lo, hi = dp[rp]; q = 2 * rp
            for k in range(9):
                a('v_dot2c_f32_bf16_dpp v%d, v16, v%d quad_perm:[%d,%d,%d,%d] row_mask:0xf bank_mask:0xf' % (Y[2 * k], lo[k], q, q, q, q))
                a('v_dot2c_f32_bf16_dpp v%d, v16, v%d quad_perm:[%d,%d,%d,%d] row_mask:0xf bank_mask:0xf' % (Y[2 * k + 1], hi[k], q, q, q, q))
        half_reduce_write(Y, 14, 15, L_DPART)
        a('s_waitcnt lgkmcnt(0)')
        if P['fdiag']: stamp(4)
        if P['dryF']:
            a('s_cmp_eq_u32 s70, 0'); a('s_mov_b32 s70, 1')
            a.branch('s_cbranch_scc1 L_fpass')
        a('s_barrier')
        if P['fdiag']: stamp(5)
        a('s_cmp_ge_u32 s3, 3')
        a.branch('s_cbranch_scc1 L_ffn_end')
        sum_publish2(8, L_DPART)
        a.label('L_ffn_end')
        endwave(9)
    attention(max(P['RW'], P['RL'], P['RU'], P['RN']), False)
    a.label('L_attF')
    attention(P['RF'], True)

    a.label('L_helper')
    a('s_sub_u32 s11, s3, 8')
    if P['prio']: a('s_setprio %d' % P['prio'])
    a('s_mul_i32 s9, s4, 9'); a('s_add_u32 s9, s9, s5'); a('s_mov_b32 s10, 1'); a('s_mov_b32 s47, s9')
    a('s_cmp_lt_u32 s5, 9')
    a.branch('s_cbranch_scc1 L_role_done')
    a('s_sub_u32 s9, s5, 9'); a('s_mov_b32 s10, 3'); a('s_lshl_b32 s47, s9, 3'); a('s_add_u32 s47, s47, s4'); a('s_add_u32 s47, s47, 72')
    a('s_cmp_lt_u32 s5, 18')
    a.branch('s_cbranch_scc1 L_role_done')
    a('s_cmp_lt_u32 s5, 23'); a('s_cselect_b32 s12, 18, 23'); a('s_cselect_b32 s10, 2, 4')
    a('s_sub_u32 s9, s5, s12'); a('s_lshl_b32 s9, s9, 3'); a('s_add_u32 s9, s9, s4')
    a('s_cmp_lt_u32 s9, 36'); a('s_cselect_b32 s10, s10, 0')
    a.label('L_role_done')
    a('s_waitcnt lgkmcnt(0)')
    if P['b0e']: a('s_barrier')
    def B0():
        if not P['b0e']: a('s_barrier')
    a('s_load_dwordx2 s[44:45], s[42:43], 0')
    srd(48, 42, 43, W_SIZE)
    if P['so']:
        a('ds_write_b32 v10, v11 offset:%d' % L_QFLAG); a('s_waitcnt lgkmcnt(0)'); B0(); a('s_endpgm')
    a('s_cmp_eq_u32 s11, 0')
    a.branch('s_cbranch_scc1 L_ctrl')
    if P['abl'] == 1:
        B0(); endwave(1)
    a('s_cmp_eq_u32 s10, 2')
    a.branch('s_cbranch_scc1 L_mod_leis')
    a('s_cmp_lg_u32 s10, 4')
    a.branch('s_cbranch_scc1 L_h23')
    a('s_lshr_b32 s46, s9, 1'); a('s_and_b32 s79, s9, 1'); a('s_mov_b32 s70, 1'); a('s_mov_b32 s71, 0')
    a.branch('s_branch L_mod_go')
    a.label('L_mod_leis')
    a('s_add_u32 s46, s9, 18'); a('s_mov_b32 s79, 0'); a('s_mov_b32 s70, 2'); a('s_mov_b32 s71, 1')
    B0()
    if P['abl'] in (2, 3): endwave(1)
    a('s_setprio %d' % P['bprio'])
    ldsflag_wait(L_QFLAG, 10, 12, 8)
    a.label('L_mod_go')
    a('s_mul_i32 s13, s79, 288'); a('s_sub_u32 s12, s11, 1'); a('s_mul_i32 s12, s12, 96'); a('s_add_u32 s13, s13, s12')
    a('s_lshl_b32 s12, s46, 7'); a('s_mul_i32 s15, s13, 6912'); a('s_add_u32 s12, s12, s15')
    srd_off(52, 36, 37, 12, 576 * 6912)
    a('s_lshl_b32 s12, s13, 1')
    srd_off(56, 34, 35, 12, 1152)
    a('v_lshrrev_b32 v2, 3, v1'); a('v_and_b32 v3, 7, v1')
    a('v_mul_u32_u24 v4, 24, v2')
    a('v_mul_u32_u24 v2, %d, v2' % (12 * 6912)); a('v_lshl_add_u32 v2, v3, 4, v2')
    if P['mod256']:
        a('s_lshr_b32 s12, s9, 2'); a('s_lshl_b32 s12, s12, 8'); a('s_and_b32 s13, s9, 3'); a('s_mul_i32 s13, s13, 144'); a('s_sub_u32 s15, s11, 1'); a('s_mul_i32 s15, s15, 48')
        a('s_add_u32 s13, s13, s15'); a('s_mul_i32 s13, s13, 6912'); a('s_add_u32 s12, s12, s13')
        srd_off(52, 36, 37, 12, 576 * 6912)
        a('v_lshrrev_b32 v2, 4, v1'); a('v_mul_u32_u24 v2, %d, v2' % (12 * 6912)); a('v_and_b32 v5, 15, v1'); a('v_lshl_add_u32 v2, v5, 4, v2')
    for k in range(8): a('v_mov_b32 v%d, 0' % (16 + k))
    a.label('L_mod_loop')
    vm = VM(a)
    vm.issue('c', 'buffer_load_dwordx4 v[24:27], v4, s[56:59], 0 offen')
    vm.issue('c', 'buffer_load_dwordx2 v[28:29], v4, s[56:59], 0 offen offset:16')
    for t in range(12):
        a('s_mov_b32 s15, %d' % (t * 6912))
        vm.issue('w', 'buffer_load_dwordx4 v[%d:%d], v2, s[52:55], s15 offen%s' % (96 + 4 * t, 99 + 4 * t, WNT))
    a('s_cmp_lg_u32 s71, 0')
    a.branch('s_cbranch_scc1 L_mod_nb')
    B0()
    a.label('L_mod_nb')
    vm.wait_tag('c')
    C = list(range(40, 52)); TT = list(range(58, 70))
    for k in range(6):
        a('v_lshlrev_b32 v%d, 16, v%d' % (C[2 * k], 24 + k)); a('v_and_b32 v%d, s78, v%d' % (C[2 * k + 1], 24 + k))
    silu(C, TT)
    for k in range(6): a('v_cvt_pk_bf16_f32 v%d, v%d, v%d' % (24 + k, C[2 * k], C[2 * k + 1]))
    stamp(1)
    spare = 33
    for tp in range(6):
        vm.wait_n(2 + 2 * tp + 2)
        A = [96 + 8 * tp + k for k in range(4)]; B = [100 + 8 * tp + k for k in range(4)]
        lo, hi, spare = pairperm(A, B, spare)
        for k in range(4):
            a('v_dot2c_f32_bf16 v%d, v%d, v%d' % (16 + 2 * k, 24 + tp, lo[k]))
            a('v_dot2c_f32_bf16 v%d, v%d, v%d' % (17 + 2 * k, 24 + tp, hi[k]))
    a('v_add_u32 v2, %d, v2' % (288 * 6912)); a('v_add_u32 v4, 576, v4')
    a('s_sub_u32 s70, s70, 1'); a('s_cmp_lg_u32 s70, 0')
    a.branch('s_cbranch_scc1 L_mod_loop')
    stamp(2)
    red8_g([16 + k for k in range(8)])
    for r in (16, 17): a('v_add_f32_dpp v%d, v%d, v%d row_ror:8 row_mask:0xf bank_mask:0xf' % (r, r, r))
    a('v_lshlrev_b32 v5, 3, v1'); a('s_lshl_b32 s12, s11, 9'); a('v_add_u32 v6, s12, v5')
    a('ds_write_b64 v6, v[16:17] offset:%d' % (L_MPART - 512))
    a('s_mov_b64 exec, 1')
    a('ds_add_rtn_u32 v12, v10, v11 offset:%d' % L_MCNT)
    a('s_mov_b64 exec, -1')
    tag_ready()
    a('v_readfirstlane_b32 s12, v12')
    a('s_cmp_lg_u32 s12, 2')
    a.branch('s_cbranch_scc1 L_mod_done')
    a('ds_read2st64_b64 v[16:19], v5 offset0:%d offset1:%d' % (L_MPART // 512, L_MPART // 512 + 1))
    a('ds_read_b64 v[20:21], v5 offset:%d' % (L_MPART + 1024))
    a('v_lshrrev_b32 v4, 4, v1')
    a('s_waitcnt lgkmcnt(0)')
    a('v_pk_add_f32 v[16:17], v[16:17], v[18:19]'); a('v_pk_add_f32 v[16:17], v[16:17], v[20:21]')
    a('v_mov_b32 v18, s44'); a('v_mov_b32 v19, s45')
    a('s_cmp_lg_u32 s71, 0')
    a.branch('s_cbranch_scc1 L_mod_pub2')
    a('s_cmp_ge_u32 s46, 9'); a('s_cselect_b32 s12, 2, 0'); a('s_cselect_b32 s13, 9, 0'); a('s_add_u32 s12, s12, s79'); a('s_mul_i32 s12, s12, 4608')
    a('s_sub_u32 s13, s46, s13'); a('s_lshl_b32 s13, s13, 9'); a('s_add_u32 s12, s12, s13'); a('s_add_u32 s12, s12, 0x%x' % W_MODP)
    a('v_lshl_add_u32 v4, v3, 2, v4'); a('v_lshlrev_b32 v4, 4, v4')
    a('s_mov_b32 exec_lo, 0x00ff00ff'); a('s_mov_b32 exec_hi, 0x00ff00ff')
    a('buffer_store_dwordx4 v[16:19], v4, s[48:51], s12 offen sc1')
    a('s_mov_b64 exec, -1')
    stamp(3)
    a.branch('s_branch L_mod_done')
    a.label('L_mod_pub2')
    a('s_mul_i32 s12, s9, 57'); a('s_lshr_b32 s12, s12, 9')
    a('s_mul_i32 s13, s12, 9'); a('s_sub_u32 s13, s9, s13')
    rnd2(16, 17, 20)
    a('v_add_f32 v20, 1.0, v16'); a('v_add_f32 v21, 1.0, v17')
    a('s_cmp_eq_u32 s12, 2'); a('s_cselect_b64 s[100:101], -1, 0')
    a('v_cndmask_b32 v16, v16, v20, s[100:101]'); a('v_cndmask_b32 v17, v17, v21, s[100:101]')
    a('v_cvt_pk_bf16_f32 v16, v16, v17')
    a('v_mov_b32 v17, v16')
    a('v_permlane16_swap_b32 v16, v17')
    a('s_lshl_b32 s12, s12, 12'); a('s_lshl_b32 s13, s13, 8'); a('s_add_u32 s12, s12, s13'); a('s_add_u32 s12, s12, 0x%x' % W_MOD)
    a('v_lshrrev_b32 v4, 5, v1'); a('v_lshl_add_u32 v4, v3, 1, v4'); a('v_lshlrev_b32 v4, 4, v4')
    a('s_mov_b32 exec_lo, 0xff'); a('s_mov_b32 exec_hi, 0xff')
    a('buffer_store_dwordx4 v[16:19], v4, s[48:51], s12 offen sc1')
    stamp(3)
    a.label('L_mod_done')
    endwave(4)
    a.label('L_h23')
    B0()
    tag_ready()
    a('s_cmp_eq_u32 s10, 3')
    a.branch('s_cbranch_scc1 L_wo_w')
    a('s_cmp_eq_u32 s10, 1')
    a.branch('s_cbranch_scc1 L_ysg')
    endwave(1)

    a.label('L_ctrl')
    vm = VM(a)
    srd(60, 16, 17, 1152)
    a('v_min_u32 v4, 35, v1')
    a('v_lshlrev_b32 v5, 3, v1'); a('v_lshlrev_b32 v6, 1, v1'); a('v_lshlrev_b32 v7, 2, v4'); a('s_mul_i32 s15, s7, 144')
    vm.issue('x', 'buffer_load_dwordx2 v[34:35], v5, s[60:63], 0 offen')
    vm.issue('x', 'buffer_load_dwordx2 v[36:37], v5, s[60:63], 0 offen offset:512')
    vm.issue('x', 'buffer_load_ushort v38, v6, s[60:63], 0 offen offset:1024')
    vm.issue('x', 'buffer_load_dword v39, v7, s[60:63], s15 offen')
    a('s_mul_i32 s12, s7, %d' % (72 * 8192)); a('s_lshl_b32 s13, s6, 8'); a('s_add_u32 s12, s12, s13')
    srd_off(52, 22, 23, 12, 576 * 8192)
    a('v_lshrrev_b32 v2, 4, v1'); a('v_lshlrev_b32 v9, 2, v2'); a('v_lshlrev_b32 v2, 14, v2'); a('v_and_b32 v3, 15, v1'); a('v_lshl_add_u32 v2, v3, 4, v2')
    if P['nowq']: a('s_mov_b32 s54, 0')
    for t in range(18):
        a('s_mov_b32 s15, %d' % ((t >> 1) * 65536 + (t & 1) * 8192))
        vm.issue('w', 'buffer_load_dwordx4 v[%d:%d], v2, s[52:55], s15 offen%s' % (96 + 4 * t, 99 + 4 * t, WNT))
    B0()
    if P['noclr']: a('s_mov_b32 s50, 0')
    for k in range(4): a('v_mov_b32 v%d, -1' % (24 + k))
    a('v_lshlrev_b32 v5, 4, v1')
    a('s_lshl_b32 s12, s8, 9'); a('s_add_u32 s12, s12, 0x%x' % W_OX)
    a('v_lshrrev_b32 v6, 5, v1'); a('v_mul_u32_u24 v6, %d, v6' % (W_OX - W_QP - 512)); a('v_add_u32 v6, v6, v5')
    a('s_sub_u32 s12, s12, %d' % (W_OX - W_QP))
    a('buffer_store_dwordx4 v[24:27], v6, s[48:51], s12 offen sc1')
    a('s_lshl_b32 s12, s8, 4'); a('s_add_u32 s12, s12, 0x%x' % W_OM)
    a('s_mov_b64 exec, 1')
    a('buffer_store_dwordx4 v[24:27], v10, s[48:51], s12 offen sc1')
    a('s_cmp_lg_u32 s7, 0')
    a.branch('s_cbranch_scc1 L_clr1')
    a('s_lshl_b32 s12, s6, 8'); a('s_add_u32 s12, s12, 0x%x' % W_CNT)
    a('buffer_store_dword v10, v10, s[48:51], s12 offen sc1')
    a.label('L_clr1')
    a('s_mov_b64 exec, -1')
    a('s_cmp_lg_u32 s10, 1')
    a.branch('s_cbranch_scc1 L_clr2')
    a('s_mov_b32 exec_hi, 0xffff')
    a('v_lshrrev_b32 v6, 2, v1'); a('v_mul_u32_u24 v6, %d, v6' % DSR); a('v_and_b32 v8, 3, v1'); a('v_lshl_add_u32 v6, v8, 4, v6')
    a('s_lshl_b32 s12, s9, 6'); a('s_add_u32 s12, s12, 0x%x' % W_DS)
    for j in range(3):
        a('buffer_store_dwordx4 v[24:27], v6, s[48:51], s12 offen sc1')
        if j < 2: a('s_add_u32 s12, s12, %d' % (12 * DSR))
    a.label('L_clr2')
    a('s_mov_b64 exec, -1')
    a('s_cmp_lg_u32 s10, 3')
    a.branch('s_cbranch_scc1 L_clr3')
    a('v_lshrrev_b32 v6, 4, v1'); a('v_mul_u32_u24 v6, %d, v6' % YSC); a('v_lshl_add_u32 v6, v3, 4, v6')
    a('s_mul_i32 s12, s4, 2304'); a('s_lshl_b32 s13, s9, 8'); a('s_add_u32 s12, s12, s13'); a('s_add_u32 s12, s12, 0x%x' % W_YS)
    a('buffer_store_dwordx4 v[24:27], v6, s[48:51], s12 offen sc1')
    if P['ys8']:
        a('s_add_u32 s12, s12, %d' % (4 * YSC))
        a('buffer_store_dwordx4 v[24:27], v6, s[48:51], s12 offen sc1')
    a.label('L_clr3')
    a('s_waitcnt vmcnt(20)')
    XS = list(range(40, 49))
    for k in range(4):
        a('v_lshlrev_b32 v%d, 16, v%d' % (XS[2 * k], 34 + k)); a('v_and_b32 v%d, s78, v%d' % (XS[2 * k + 1], 34 + k))
    a('v_lshlrev_b32 v48, 16, v38')
    ln_stats(XS, 60, 61, 62, 63)
    a('v_lshlrev_b32 v56, 16, v39'); a('v_and_b32 v57, s78, v39')
    a('v_sub_f32 v56, v56, v60'); a('v_sub_f32 v57, v57, v60'); rnd2(56, 57, 58)
    a('v_mul_f32 v56, v56, v61'); a('v_mul_f32 v57, v57, v61'); rnd2(56, 57, 58)
    tag_ready()
    a('s_lshl_b32 s12, s8, 4'); a('s_add_u32 s12, s12, 0x%x' % W_RDYA); a('s_lshl_b32 s13, s47, 4'); a('s_add_u32 s13, s13, 0x%x' % W_RDYB)
    a('v_mov_b32 v8, s13'); a('v_writelane_b32 v8, s12, 0')
    a('v_mov_b32 v66, s44'); a('v_mov_b32 v67, s45')
    a('s_bitcmp1_b32 s10, 0'); a('s_cselect_b32 s12, 3, 1')
    a('v_lshlrev_b32 v5, 4, v4')
    a('s_mul_i32 s64, s7, 576'); a('s_add_u32 s64, s64, 0x%x' % W_MODP)
    for k in range(1, 4): a('s_add_u32 s%d, s%d, 4608' % (64 + k, 63 + k))
    a('v_and_b32 v6, 7, v1'); a('v_lshlrev_b32 v6, 4, v6'); a('s_lshl_b32 s68, s6, 7'); a('s_add_u32 s68, s68, 0x%x' % W_RDYA)
    a('s_waitcnt vmcnt(0)')
    stamp(1)
    a('s_mov_b32 exec_lo, s12'); a('s_mov_b32 exec_hi, 0')
    a('buffer_store_dwordx4 v[64:67], v8, s[48:51], 0 offen sc1')
    a('s_mov_b64 exec, -1')
    if P['noclr']: a('s_mov_b32 s50, 0x%x' % W_SIZE)
    if P['abl'] in (1, 2):
        a('ds_write_b32 v10, v11 offset:%d' % L_QFLAG); endwave(1)
    wq_pairs = []
    def wq_perms():
        spare = 68
        for tp in range(9):
            A = [96 + 8 * tp + k for k in range(4)]; B = [100 + 8 * tp + k for k in range(4)]
            lo, hi, spare = pairperm(A, B, spare)
            wq_pairs.append((lo, hi))
        for k in range(8): a('v_mov_b32 v%d, 0' % (16 + k))
    poll2(['buffer_load_dwordx4 v[%d:%d], v5, s[48:51], s%d offen sc1' % (24 + 8 * k, 27 + 8 * k, 64 + k) for k in range(4)] +
          ['buffer_load_dwordx4 v[28:31], v6, s[48:51], s68 offen sc1'],
          tagcheck([24, 32, 40, 48, 28]), 'h1', filler=wq_perms, sleep=P['h1sleep'])
    stamp(2)
    for base in (24, 40):
        a('v_pk_add_f32 v[%d:%d], v[%d:%d], v[%d:%d]' % (base, base + 1, base, base + 1, base + 8, base + 9))
    rnd2(40, 41, 28)
    rnd2(24, 25, 29)
    a('v_add_f32 v40, 1.0, v40'); a('v_add_f32 v41, 1.0, v41')
    rnd2(40, 41, 28)
    a('v_mul_f32 v56, v56, v40'); a('v_mul_f32 v57, v57, v41'); rnd2(56, 57, 28)
    a('v_add_f32 v56, v56, v24'); a('v_add_f32 v57, v57, v25')
    a('v_cvt_pk_bf16_f32 v56, v56, v57')
    a('ds_write_b32 v7, v56 offset:%d' % L_H1S)
    for jp in range(9): a('ds_read_b32 v%d, v9 offset:%d' % (40 + jp, L_H1S + 16 * jp))
    a('v_lshlrev_b32 v5, 4, v1'); a('v_lshlrev_b32 v6, 5, v3'); a('v_lshl_add_u32 v6, v9, 1, v6')
    a('s_lshl_b32 s15, s8, 9'); a('s_add_u32 s15, s15, 0x%x' % W_QP)
    a('s_waitcnt lgkmcnt(0)')
    for jp in range(9):
        lo, hi = wq_pairs[jp]
        for k in range(4):
            a('v_dot2c_f32_bf16 v%d, v%d, v%d' % (16 + 2 * k, 40 + jp, lo[k]))
            a('v_dot2c_f32_bf16 v%d, v%d, v%d' % (17 + 2 * k, 40 + jp, hi[k]))
    red8_g([16 + k for k in range(8)])
    a('v_min_u32 v16, -2, v16'); a('v_min_u32 v17, -2, v17')
    a('buffer_store_dwordx2 v[16:17], v6, s[48:51], s15 offen sc1')
    stamp(3)
    a('s_lshl_b32 s15, s6, 12'); a('s_add_u32 s15, s15, 0x%x' % W_QP)
    a('v_and_b32 v6, 31, v1'); a('v_lshlrev_b32 v6, 3, v6'); a('v_lshrrev_b32 v7, 5, v1'); a('v_lshl_add_u32 v6, v7, 2, v6')
    if P['qp0']: a('s_sleep %d' % P['qp0'])
    def oxcheck():
        tree_add4([24, 28, 32, 36])
        a('v_permlane32_swap_b32 v24, v26'); a('v_permlane32_swap_b32 v25, v27')
        a('v_add_f32 v24, v24, v26'); a('v_add_f32 v25, v25, v27')
        a('v_max_u32 v26, v24, v25')
        a('v_cvt_pk_bf16_f32 v28, v24, v25')
        a('v_cmp_eq_u32 vcc, -1, v26')
    poll2(['buffer_load_dwordx4 v[%d:%d], v5, s[48:51], s15 offen offset:%d sc1' % (24 + 4 * k, 27 + 4 * k, 1024 * k) for k in range(4)], oxcheck, 'qp', sleep=P['qpsleep'])
    a('ds_write_b32 v6, v28 offset:%d' % L_QS)
    a('ds_write_b32 v10, v11 offset:%d' % L_QFLAG)
    stamp(4)
    def wo_issue():
        vm = VM(a)
        a('s_setprio %d' % P['bprio'])
        a('s_lshl_b32 s46, s4, 2'); a('s_add_u32 s46, s46, s11')
        a('s_mul_i32 s12, s46, 147456'); a('s_lshl_b32 s13, s9, 7'); a('s_add_u32 s12, s12, s13')
        srd_off(52, 24, 25, 12, 4096 * 1152)
        a('v_bfe_u32 v2, v1, 4, 1'); a('v_mul_u32_u24 v2, %d, v2' % (64 * 1152)); a('v_lshrrev_b32 v3, 5, v1'); a('v_mul_u32_u24 v3, 2304, v3')
        a('v_add_u32 v2, v2, v3'); a('v_and_b32 v3, 15, v1'); a('v_lshl_add_u32 v2, v3, 3, v2')
        for n in range(16):
            a('s_mov_b32 s15, %d' % (4608 * n))
            for e in range(2):
                vm.throttle(P['wN'])
                vm.issue('w', 'buffer_load_dwordx2 v[%d:%d], v2, s[52:55], s15 offen offset:%d%s' % (96 + 4 * n + 2 * e, 97 + 4 * n + 2 * e, e * 1152, WNT))
    if P['abl'] == 3: endwave(1)
    a('s_cmp_eq_u32 s10, 3')
    a.branch('s_cbranch_scc1 L_wo')
    a('s_cmp_eq_u32 s10, 2')
    a.branch('s_cbranch_scc1 L_reducer')
    a('s_cmp_eq_u32 s10, 1')
    a.branch('s_cbranch_scc1 L_ysg')
    endwave(6)

    a.label('L_ysg')
    a('v_min_u32 v2, 35, v1'); a('s_mul_i32 s12, s11, 36'); a('v_add_u32 v2, s12, v2')
    a('v_lshlrev_b32 v3, 3, v2'); a('v_lshlrev_b32 v2, 4, v2')
    a('v_lshlrev_b32 v4, 4, v1'); a('v_add_u32 v5, 64, v1'); a('v_min_u32 v5, 71, v5'); a('v_lshlrev_b32 v5, 4, v5')
    srd(68, 16, 17, 1152)
    a('s_mov_b32 s52, 0x%x' % W_MOD); a('s_mov_b32 s55, 0x%x' % (W_RDYB + 72 * 16))
    ldscnt_wait(L_OCNT, 10, 12, 8, 4)
    poll2(['buffer_load_dwordx4 v[24:27], v2, s[48:51], s52 offen sc1', 'buffer_load_dwordx4 v[28:31], v4, s[48:51], s55 offen sc1',
           'buffer_load_dwordx4 v[32:35], v5, s[48:51], s55 offen sc1', 'buffer_load_dwordx2 v[36:37], v3, s[68:71], 0 offen'], tagcheck([24, 28, 32]), 'ysr0', sleep=4)
    for src, dst in ((24, 12), (25, 14), (36, 16), (37, 18)):
        a('v_lshlrev_b32 v%d, 16, v%d' % (dst, src)); a('v_and_b32 v%d, s78, v%d' % (dst + 1, src))
    a('s_and_b32 s12, s5, %d' % (7 if P['ys8'] else 3)); a('s_mul_i32 s52, s12, %d' % YSC); a('s_add_u32 s52, s52, 0x%x' % W_YS)
    for k in range(1, 4): a('s_add_u32 s%d, s%d, 4608' % (52 + k, 51 + k))
    a('s_mov_b32 exec_hi, 0xf')
    stamp(6)
    def ysissue(q):
        B = 24 + 32 * q
        for k in range(8): a('buffer_load_dwordx4 v[%d:%d], v2, s[48:51], s%d offen offset:%d sc1' % (B + 4 * k, B + 3 + 4 * k, 52 + (k >> 1), (k & 1) * 2304))
    def yscheck(q):
        B = 24 + 32 * q
        for step in (1, 2, 4):
            for k in range(0, 8, 2 * step):
                for hh in (0, 2):
                    x = B + 4 * k + hh; y = x + 4 * step; d = 20 + hh if step == 4 else x
                    a('v_pk_add_f32 v[%d:%d], v[%d:%d], v[%d:%d]' % (d, d + 1, x, x + 1, y, y + 1))
        a('v_max3_u32 v4, v20, v21, v22'); a('v_max_u32 v4, v4, v23')
        a('v_cmp_eq_u32 vcc, -1, v4')
    poll_rot(P['ysK'], ysissue, yscheck, 8, 'ys', P['yssleep'])
    stamp(7)
    rnd2(20, 21, 4); rnd2(22, 23, 5)
    a('v_pk_mul_f32 v[20:21], v[20:21], v[12:13]'); a('v_pk_mul_f32 v[22:23], v[22:23], v[14:15]')
    rnd2(20, 21, 4); rnd2(22, 23, 5)
    a('v_pk_add_f32 v[20:21], v[20:21], v[16:17]'); a('v_pk_add_f32 v[22:23], v[22:23], v[18:19]')
    rnd2(20, 21, 4); rnd2(22, 23, 5)
    a('ds_write_b128 v2, v[20:23] offset:%d' % L_X2)
    a('s_waitcnt lgkmcnt(0)')
    a('s_barrier')
    a('s_waitcnt vmcnt(0)')
    endwave(9)

    a.label('L_wo_w')
    if P['abl'] in (2, 3): endwave(1)
    a('s_setprio %d' % P['bprio'])
    ldsflag_wait(L_QFLAG, 10, 12, 8)
    a.label('L_wo')
    wo_issue()
    a('v_and_b32 v4, 7, v1'); a('v_lshlrev_b32 v4, 4, v4')
    a('s_lshl_b32 s15, s46, 7'); a('s_add_u32 s15, s15, 0x%x' % W_RDYA)
    poll2(['buffer_load_dwordx4 v[28:31], v4, s[48:51], s15 offen sc1'], tagcheck([28]), 'rdyo', sleep=P['mlsleep'])
    a('v_lshrrev_b32 v9, 5, v1'); a('v_lshlrev_b32 v9, 4, v9'); a('v_xor_b32 v9, v9, v4')
    a('s_lshl_b32 s65, s46, 7'); a('s_add_u32 s65, s65, 0x%x' % W_OM)
    stamp(5)
    spare = 160
    wp = []
    for n in range(16):
        lo, hi, spare = pairperm([96 + 4 * n, 97 + 4 * n], [98 + 4 * n, 99 + 4 * n], spare)
        wp.append((lo, hi))
    a('v_lshlrev_b32 v5, 4, v1')
    a('s_lshl_b32 s15, s46, 12'); a('s_add_u32 s15, s15, 0x%x' % W_OX)
    a('v_lshrrev_b32 v6, 4, v1'); a('v_mul_u32_u24 v8, %d, v6' % YSC); a('v_lshl_add_u32 v6, v3, 2, v6'); a('v_lshlrev_b32 v6, 2, v6')
    a('s_lshl_b32 s12, s11, 8'); a('v_add_u32 v6, s12, v6')
    a('v_lshlrev_b32 v7, 4, v3'); a('v_add_u32 v8, v8, v7')
    a('s_mul_i32 s64, s4, 2304'); a('s_lshl_b32 s13, s9, 8'); a('s_add_u32 s64, s64, s13'); a('s_add_u32 s64, s64, 0x%x' % W_YS)
    a('s_add_u32 s66, s64, %d' % (4 * YSC))
    stamp(6)
    for k in range(4): a('v_mov_b32 v%d, 0' % (16 + k))
    if P['dryW']:
        a('s_mov_b32 s70, 0')
        a.branch('s_branch L_wo_dry')
        a.label('L_wpass')
        for k in range(4): a('v_mov_b32 v%d, 0' % (16 + k))
    ldscnt_wait(L_OCNT, 10, 12, 8, 2)
    def oxissue(q):
        B = 24 + 20 * q
        if not P['omlast']: a('buffer_load_dwordx2 v[%d:%d], v9, s[48:51], s65 offen sc1' % (B + 16, B + 17))
        for k in range(4): a('buffer_load_dwordx4 v[%d:%d], v5, s[48:51], s15 offen offset:%d sc1' % (B + 4 * k, B + 3 + 4 * k, 1024 * k))
        if P['omlast']: a('buffer_load_dwordx2 v[%d:%d], v9, s[48:51], s65 offen sc1' % (B + 16, B + 17))
    def oxcheck(q):
        B = 24 + 20 * q; M = B + 16; Lr = B + 17
        DP = ('quad_perm:[1,0,3,2]', 'quad_perm:[2,3,0,1]', 'row_half_mirror')
        a('v_max_f32_dpp v92, v%d, v%d %s row_mask:0xf bank_mask:0xf' % (M, M, DP[0]))
        for d in DP[1:]: a('v_max_f32_dpp v92, v92, v92 %s row_mask:0xf bank_mask:0xf' % d)
        a('v_max_u32 v93, v%d, v%d' % (M, Lr))
        a('v_sub_f32 v%d, v%d, v92' % (M, M)); a('v_mul_f32 v%d, 0x%x, v%d' % (M, LOG2E, M)); a('v_exp_f32 v%d, v%d' % (M, M))
        a('v_cmp_eq_u32 s[12:13], -1, v93')
        a('v_mul_f32 v%d, v%d, v%d' % (Lr, Lr, M))
        for d in DP: a('v_add_f32_dpp v%d, v%d, v%d %s row_mask:0xf bank_mask:0xf' % (Lr, Lr, Lr, d))
        a('v_rcp_f32 v%d, v%d' % (Lr, Lr))
        a('v_mul_f32 v%d, v%d, v%d' % (M, M, Lr))
        for k in range(4): a('v_mov_b32_dpp v%d, v%d row_newbcast:%d row_mask:0xf bank_mask:0xf' % (84 + 2 * k, M, 2 * k))
        for hh in (0, 2): a('v_pk_mul_f32 v[%d:%d], v[%d:%d], v[84:85] op_sel_hi:[1,0]' % (B + hh, B + 1 + hh, B + hh, B + 1 + hh))
        for k in range(1, 4):
            for hh in (0, 2):
                a('v_pk_fma_f32 v[%d:%d], v[%d:%d], v[%d:%d], v[%d:%d] op_sel_hi:[1,0,1]' % (B + hh, B + 1 + hh, B + 4 * k + hh, B + 1 + 4 * k + hh, 84 + 2 * k, 85 + 2 * k, B + hh, B + 1 + hh))
        a('v_permlane32_swap_b32 v%d, v%d' % (B, B + 2)); a('v_permlane32_swap_b32 v%d, v%d' % (B + 1, B + 3))
        a('v_add_f32 v%d, v%d, v%d' % (B, B, B + 2)); a('v_add_f32 v%d, v%d, v%d' % (B + 1, B + 1, B + 3))
        a('v_max_u32 v93, v%d, v%d' % (B, B + 1))
        a('v_cvt_pk_bf16_f32 v94, v%d, v%d' % (B, B + 1))
        a('v_cmp_eq_u32 vcc, -1, v93')
        a('s_or_b64 vcc, vcc, s[12:13]')
    poll_rot(P['oxK'], oxissue, oxcheck, 5, 'ox', P['oxsleep'])
    a.label('L_wo_dry')
    stamp(7)
    for n in range(16):
        lo, hi = wp[n]
        for k in range(2):
            a('v_dot2c_f32_bf16_dpp v%d, v94, v%d row_newbcast:%d row_mask:0xf bank_mask:0xf' % (16 + 2 * k, lo[k], n))
            a('v_dot2c_f32_bf16_dpp v%d, v94, v%d row_newbcast:%d row_mask:0xf bank_mask:0xf' % (17 + 2 * k, hi[k], n))
    a('v_permlane32_swap_b32 v16, v18'); a('v_permlane32_swap_b32 v17, v19')
    a('v_add_f32 v16, v16, v18'); a('v_add_f32 v17, v17, v19')
    a('v_permlane16_swap_b32 v16, v17')
    a('v_add_f32 v16, v16, v17')
    a('ds_write_b32 v6, v16 offset:%d' % L_WPART)
    a('s_waitcnt lgkmcnt(0)')
    stamp(8)
    if P['dryW']:
        a('s_cmp_eq_u32 s70, 0')
        a.branch('s_cbranch_scc1 L_wo_nb')
    a('s_barrier')
    a('s_cmp_lg_u32 s11, 0')
    a.branch('s_cbranch_scc1 L_wo_end')
    a.label('L_wo_nb')
    assert P['oxK'] <= 2
    for w in range(4): a('ds_read_b128 v[%d:%d], v7 offset:%d' % (64 + 4 * w, 67 + 4 * w, L_WPART + 256 * w))
    a('s_waitcnt lgkmcnt(0)')
    tree_add4([64, 68, 72, 76])
    for k in range(4): a('v_min_u32 v%d, -2, v%d' % (64 + k, 64 + k))
    if P['dryW']:
        a('s_cmp_eq_u32 s70, 0'); a('s_mov_b32 s70, 1')
        a.branch('s_cbranch_scc1 L_wpass')
    a('buffer_store_dwordx4 v[64:67], v8, s[48:51], s64 offen sc1')
    if P['ys8']: a('buffer_store_dwordx4 v[64:67], v8, s[48:51], s66 offen sc1')
    a.label('L_wo_end')
    endwave(9)

    a.label('L_reducer')
    if P['abl'] == 4: endwave(1)
    a('s_setprio 0')
    a('v_lshlrev_b32 v5, 4, v1'); a('v_add_u32 v6, 128, v1'); a('v_min_u32 v6, 143, v6'); a('v_lshlrev_b32 v6, 4, v6')
    a('s_mov_b32 s15, 0x%x' % W_RDYB)
    a('v_and_b32 v7, 3, v1'); a('v_lshlrev_b32 v8, 4, v7')
    a('s_lshl_b32 s64, s9, 6'); a('s_add_u32 s65, s64, 0x%x' % (W_MOD + 3 * 4096)); a('s_add_u32 s64, s64, 0x%x' % W_MOD)
    ldsflag_wait(L_TRIG, 10, 12, 8)
    poll2(['buffer_load_dwordx4 v[%d:%d], v5, s[48:51], s15 offen offset:%d sc1' % (32 + 4 * k, 35 + 4 * k, 1024 * k) for k in range(2)] +
          ['buffer_load_dwordx4 v[44:47], v6, s[48:51], s15 offen sc1',
           'buffer_load_dwordx4 v[24:27], v8, s[48:51], s64 offen sc1', 'buffer_load_dwordx4 v[28:31], v8, s[48:51], s65 offen sc1'],
          tagcheck([24, 28, 32, 36, 44]), 'rdyr', sleep=8)
    a('v_bfe_u32 v12, v1, 3, 1'); a('v_bfe_u32 v13, v1, 2, 1')
    a('v_lshlrev_b32 v7, 2, v7'); a('v_lshl_add_u32 v7, v12, 1, v7'); a('v_add_u32 v7, v7, v13')
    a('v_lshlrev_b32 v64, 1, v7')
    srd(64, 16, 17, 1152)
    a('s_lshl_b32 s15, s9, 5')
    a('buffer_load_ushort v60, v64, s[64:67], s15 offen')
    a('v_cmp_eq_u32 s[68:69], 1, v12'); a('v_cmp_eq_u32 s[70:71], 1, v13')
    for src, dst in ((24, 61), (28, 62)):
        a('v_cndmask_b32 v14, v%d, v%d, s[68:69]' % (src, src + 1))
        a('v_lshlrev_b32 v15, 16, v14'); a('v_and_b32 v14, s78, v14')
        a('v_cndmask_b32 v%d, v15, v14, s[70:71]' % dst)
    a('s_waitcnt vmcnt(0)')
    a('v_lshlrev_b32 v60, 16, v60')
    srd(64, 38, 39, 1152)
    a('s_lshl_b32 s52, s9, 6'); a('s_add_u32 s52, s52, 0x%x' % (W_YS + (5 if P['ys8'] else 1) * YSC))
    for k in range(1, 4): a('s_add_u32 s%d, s%d, 4608' % (52 + k, 51 + k))
    a('s_mul_i32 s56, s9, %d' % DSR); a('s_add_u32 s56, s56, 0x%x' % W_DS); a('s_add_u32 s57, s56, 4096')
    for q in range(3):
        for k in range(4): a('v_mov_b32 v%d, 0' % (112 + 20 * q + k))
    ldscnt_wait(L_OCNT, 10, 12, 8, 4)
    stamp(6)
    def yscheck():
        tree_add4([24 + 4 * k for k in range(8)])
        a('v_max3_u32 v28, v24, v25, v26'); a('v_max_u32 v28, v28, v27')
        a('v_cmp_eq_u32 vcc, -1, v28')
    poll2(['buffer_load_dwordx4 v[%d:%d], v8, s[48:51], s%d offen offset:%d sc1' % (24 + 4 * k, 27 + 4 * k, 52 + (k >> 1), (k & 1) * 2304) for k in range(8)], yscheck, 'ysr', sleep=P['rsleep'])
    stamp(7)
    a('v_cndmask_b32 v24, v24, v26, s[68:69]'); a('v_cndmask_b32 v25, v25, v27, s[68:69]')
    a('v_cndmask_b32 v16, v24, v25, s[70:71]')
    rnd1(16); a('v_mul_f32 v16, v16, v61'); rnd1(16); a('v_add_f32 v60, v60, v16'); rnd1(60)
    a('s_lshl_b32 s15, s9, 5')
    nl = 5
    def dsissue(q):
        B = 96 + 20 * q
        for k in range(nl):
            if k == 4: a('s_mov_b32 exec_hi, 0')
            a('buffer_load_dwordx4 v[%d:%d], v5, s[48:51], s%d offen offset:%d sc1' % (B + 4 * k, B + 3 + 4 * k, 56 + (k >> 2), (k & 3) * 1024))
        a('s_mov_b32 exec_hi, -1')
    def dscheck(q):
        B = 96 + 20 * q
        for hh in (0, 2): a('v_pk_add_f32 v[%d:%d], v[%d:%d], v[%d:%d]' % (16 + hh, 17 + hh, B + hh, B + 1 + hh, B + 4 + hh, B + 5 + hh))
        for hh in (0, 2): a('v_pk_add_f32 v[%d:%d], v[%d:%d], v[%d:%d]' % (20 + hh, 21 + hh, B + 8 + hh, B + 9 + hh, B + 12 + hh, B + 13 + hh))
        for hh in (0, 2): a('v_pk_add_f32 v[%d:%d], v[%d:%d], v[%d:%d]' % (16 + hh, 17 + hh, 16 + hh, 17 + hh, B + 16 + hh, B + 17 + hh))
        for hh in (0, 2): a('v_pk_add_f32 v[%d:%d], v[%d:%d], v[%d:%d]' % (16 + hh, 17 + hh, 16 + hh, 17 + hh, 20 + hh, 21 + hh))
        for k in range(2): a('v_add_f32_dpp v%d, v%d, v%d row_ror:8 row_mask:0xf bank_mask:0x3' % (16 + k, 16 + k, 16 + k))
        for k in range(2): a('v_add_f32_dpp v%d, v%d, v%d row_ror:8 row_mask:0xf bank_mask:0xc' % (16 + k, 18 + k, 18 + k))
        a('v_add_f32_dpp v16, v16, v16 row_shl:4 row_mask:0xf bank_mask:0x5')
        a('v_add_f32_dpp v16, v17, v17 row_shr:4 row_mask:0xf bank_mask:0xa')
        for sw in ('v_permlane16_swap_b32', 'v_permlane32_swap_b32'):
            a('v_mov_b32 v17, v16'); a('%s v16, v17' % sw); a('v_add_f32 v16, v16, v17')
        a('v_cmp_eq_u32 vcc, -1, v16')
    poll_rot(P['dsK'], dsissue, dscheck, nl, 'ds', P['dssleep'])
    stamp(8)
    rnd1(16); a('v_mul_f32 v16, v16, v62'); rnd1(16); a('v_add_f32 v16, v60, v16')
    a('v_cvt_pk_bf16_f32 v16, v16, v16')
    a('s_mov_b64 exec, 0xffff')
    a('buffer_store_short v16, v64, s[64:67], s15 offen')
    a('s_cmp_lg_u32 s9, 0')
    a.branch('s_cbranch_scc1 L_red_end')
    a('v_mov_b32 v18, s44'); a('v_mov_b32 v19, s45')
    a('s_mov_b64 exec, 1')
    a('buffer_store_dwordx2 v[18:19], v10, s[48:51], 0 offen')
    a.label('L_red_end')
    a('s_waitcnt vmcnt(0)')
    endwave(9)

    a.label('L_exit')
    a('s_endpgm')

    head = open('adaLN_cond__mha_block_cached__swiglu_ffn__decode.s.ref').read().split('\n')
    hdr = [l for l in head if l.startswith(';') and '@launch' not in l and 'Override launch' not in l and 'grid=ceil' not in l]
    out = '\n'.join(hdr) + '\n'
    out += '; generated by gen3.py params: %s\n' % json.dumps(P, sort_keys=True)
    out += '; @launch grid=(256,1,1) block=(768,1,1) lds=%d\n' % L_SIZE
    out += '.amdgcn_target "amdgcn-amd-amdhsa--gfx950"\n.text\n.globl %s\n.p2align 8\n.type %s,@function\n' % (KNAME, KNAME)
    out += a.text()
    assert a.maxv < 168, a.maxv
    out += '''.section .rodata,"a"
.p2align 6
.amdhsa_kernel %s
  .amdhsa_next_free_vgpr 168
  .amdhsa_next_free_sgpr 102
  .amdhsa_accum_offset 168
  .amdhsa_group_segment_fixed_size 0
  .amdhsa_kernarg_size 112
  .amdhsa_user_sgpr_count 2
  .amdhsa_user_sgpr_kernarg_segment_ptr 1
  .amdhsa_system_sgpr_workgroup_id_x 1
  .amdhsa_float_denorm_mode_32 3
.end_amdhsa_kernel
''' % KNAME
    return out

if __name__ == '__main__':
    kw = {}
    outp = sys.argv[1]
    for x in sys.argv[2:]:
        k, v = x.split('='); kw[k] = int(v)
    open(outp, 'w').write(gen(**kw))
```
